```python
import torch

def _softmax(x, axis=-1):
    return torch.softmax(x, dim=axis)
def _gelu(x):
    return torch.nn.functional.gelu(x, approximate="tanh")
def _silu(x):
    return torch.nn.functional.silu(x)
def _sigmoid(x):
    return torch.sigmoid(x)
def _layernorm(x, axis=-1, eps=1e-5):
    m = x.mean(dim=axis, keepdim=True)
    v = x.var(dim=axis, keepdim=True, unbiased=False)
    return (x - m) / torch.sqrt(v + eps)
def _scatter_add(tgt, idx, src, axis=0):
    return tgt.clone().index_add_(axis, idx, src)
def _segment_sum(src, seg, n):
    out = torch.zeros((n,) + src.shape[1:], dtype=src.dtype)
    return out.index_add_(0, seg, src)
def _pad(x, pw):
    flat = tuple(v for pair in reversed(pw) for v in pair)
    return torch.nn.functional.pad(x, flat)

kernel_name = 'standalone__detection_seg_mask2former__vision'

def setup_inputs():

    _w = (lambda a: (lambda t: t.to(torch.bfloat16) if t.is_floating_point() else t)(torch.as_tensor(a)))
    H = W = 384
    C = 96
    Hc, Wc = H // 2, W // 2
    nh = 4
    Nq = 16
    sc = C ** -0.5
    return {
        "q": _w((lambda *s: torch.randn(*s, dtype=torch.bfloat16) * 0.2)(1, Nq, C)),
        "f_hi": _w((lambda *s: torch.randn(*s, dtype=torch.bfloat16) * 0.2)(1, H, W, C)),
        "f_lo": _w((lambda *s: torch.randn(*s, dtype=torch.bfloat16) * 0.4)(1, Hc, Wc, C)),
        "w_lat": _w((lambda *s: torch.randn(*s, dtype=torch.bfloat16) * 0.4)(C, C) * sc),
        "w_q": _w((lambda *s: torch.randn(*s, dtype=torch.bfloat16) * 3.2)(nh, C, C // nh) * sc),
        "w_k": _w((lambda *s: torch.randn(*s, dtype=torch.bfloat16) * 3.2)(nh, C, C // nh) * sc),
        "w_v": _w((lambda *s: torch.randn(*s, dtype=torch.bfloat16) * 3.2)(nh, C, C // nh) * sc),
        "w_o": _w((lambda *s: torch.randn(*s, dtype=torch.bfloat16) * 3.2)(C, C) * sc),
        "w_m": _w((lambda *s: torch.randn(*s, dtype=torch.bfloat16) * 1.6)(C, C) * sc),
    }

def reference(q, f_hi, f_lo, w_lat, w_q, w_k, w_v, w_o, w_m):
    B, Nq, C = q.shape
    _, H, W, _ = f_hi.shape
    nh = w_q.shape[0]
    dh = C // nh
    up = (lambda x, n, axis: torch.repeat_interleave(x, n, dim=axis))((lambda x, n, axis: torch.repeat_interleave(x, n, dim=axis))(f_lo, 2, axis=1), 2, axis=2)
    feat = f_hi + up @ w_lat
    feat = _layernorm(feat, axis=-1)
    kv = feat.reshape(B, H * W, C)
    m_embed = q @ w_m
    mask_bias = torch.einsum('bqc,bkc->bqk', m_embed, kv) * (C ** -0.5)
    Q = torch.einsum('bqc,hcd->bhqd', q, w_q)
    K = torch.einsum('bkc,hcd->bhkd', kv, w_k)
    V = torch.einsum('bkc,hcd->bhkd', kv, w_v)
    logits = torch.einsum('bhqd,bhkd->bhqk', Q, K) * (dh ** -0.5)
    logits = logits + mask_bias[:, None, :, :]
    attn = _softmax(logits, axis=-1)
    ctx = torch.einsum('bhqk,bhkd->bqhd', attn, V).reshape(B, Nq, C)
    return q + ctx @ w_o
```

```python
import re
TRANS = ("v_exp_f32", "v_log_f32", "v_rcp_f32", "v_rsq_f32", "v_sqrt_f32", "v_sin_f32", "v_cos_f32")
def regs_of(op):
    op = op.strip()
    op = re.sub(r"^(neg|abs)\((.*)\)$", r"\2", op)
    op = op.lstrip("-").strip("|")
    m = re.fullmatch(r"([vsa])(\d+)", op)
    if m: return {(m.group(1), int(m.group(2)))}
    m = re.fullmatch(r"([vsa])\[(\d+):(\d+)\]", op)
    if m: return {(m.group(1), i) for i in range(int(m.group(2)), int(m.group(3)) + 1)}
    if op == "vcc": return {("s", 106), ("s", 107)}
    if op == "vcc_lo": return {("s", 106)}
    if op == "vcc_hi": return {("s", 107)}
    if op == "exec": return {("s", 126), ("s", 127)}
    if op == "exec_lo": return {("s", 126)}
    if op == "exec_hi": return {("s", 127)}
    if op == "m0": return {("s", 124)}
    return set()

class Ins:
    def __init__(self, text):
        self.text = text
        t = text.split(";")[0].strip()
        self.label = None; self.mn = None
        self.w = set(); self.r = set(); self.srcC = set(); self.srcAB = set()
        self.valu = self.trans = self.mfma = self.dpp = self.perm = self.rdlane = self.vmem = self.ds = self.salu = False
        self.wide_store = set(); self.ldsdma = False; self.passes = 0; self.branch = None; self.uncond = False; self.nop = 0
        self.load_dst = set()
        if not t or t.startswith("."): self.kind = "dir"; return
        if t.endswith(":"): self.label = t[:-1]; self.kind = "label"; return
        self.kind = "ins"
        parts = t.split(None, 1)
        mn = self.mn = parts[0]
        rest = parts[1] if len(parts) > 1 else ""
        ops = []; depth = 0; cur = ""
        for ch in rest:
            if ch == "[": depth += 1
            if ch == "]": depth -= 1
            if ch == "," and depth == 0: ops.append(cur.strip()); cur = ""
            else: cur += ch
        if cur.strip(): ops.append(cur.strip())
        mods = ""
        if ops:
            sp = ops[-1].split(None, 1)
            ops[-1] = sp[0]; mods = sp[1] if len(sp) > 1 else ""
        R = [regs_of(o) for o in ops]
        allr = lambda L: set().union(*L) if L else set()
        if mn == "s_nop": self.nop = int(ops[0], 0) + 1; self.salu = True; return
        if mn.startswith("s_cbranch") or mn == "s_branch":
            self.branch = ops[0]; self.uncond = mn == "s_branch"; self.salu = True; return
        if mn == "s_endpgm": self.uncond = True; self.branch = "__end__"; return
        if mn.startswith("v_mfma"):
            self.mfma = True; self.passes = 8 if "32x32x16" in mn else 4 if "16x16x32" in mn else None
            assert self.passes, mn
            self.w = R[0]; self.srcAB = R[1] | R[2]; self.srcC = R[3]; self.r = self.srcAB | self.srcC; return
        if mn.startswith("v_"):
            self.valu = True
            base = mn.replace("_e32", "").replace("_e64", "").replace("_dpp", "").replace("_sdwa", "")
            self.trans = base in TRANS
            self.dpp = "_dpp" in mn or "quad_perm" in mods or "row_" in mods
            if base.startswith("v_permlane"):
                self.perm = True; self.w = R[0] | R[1]; self.r = R[0] | R[1]; return
            if base in ("v_readfirstlane_b32", "v_readlane_b32"):
                self.rdlane = True; self.w = R[0]; self.r = allr(R[1:]); return
            if base.startswith("v_cmp"):
                self.w = R[0]; self.r = allr(R[1:]); return
            if base in ("v_add_co_u32", "v_addc_co_u32", "v_sub_co_u32"):
                self.w = R[0] | R[1]; self.r = allr(R[2:]); return
            self.w = R[0]; self.r = allr(R[1:])
            if base in ("v_fmac_f32", "v_dot2c_f32_bf16", "v_writelane_b32") or self.dpp: self.r |= R[0]
            if base == "v_cndmask_b32" and len(ops) == 3: self.r |= regs_of("vcc")
            return
        if mn.startswith("ds_"):
            self.ds = True
            if mn.startswith("ds_read") or mn.startswith("ds_bpermute") or mn.startswith("ds_permute") or mn.startswith("ds_swizzle") or "_rtn" in mn:
                self.w = R[0]; self.load_dst = R[0]; self.r = allr(R[1:])
            else: self.r = allr(R)
            return
        if mn.startswith("buffer_") or mn.startswith("global_"):
            self.vmem = True
            if mn in ("buffer_wbl2", "buffer_inv"): return
            toks = mods.split()
            if "lds" in toks or "_lds_" in mn:
                self.ldsdma = True; self.r = allr(R) | {("s", 124)}; return
            if "load" in mn: self.w = R[0]; self.load_dst = R[0]; self.r = allr(R[1:])
            elif "atomic" in mn:
                self.r = allr(R)
                if "sc0" in toks: self.w = R[0]; self.load_dst = R[0]
            else:
                self.r = allr(R)
                if "x4" in mn or "x3" in mn: self.wide_store = R[0] if mn.startswith("buffer_") else R[1]
            return
        if mn.startswith("s_"):
            self.salu = True
            if mn.startswith("s_cmp") or mn in ("s_waitcnt", "s_barrier", "s_sleep", "s_setprio", "s_bitcmp0_b32", "s_bitcmp1_b32"):
                self.r = allr(R); return
            self.w = R[0] if R else set(); self.r = allr(R[1:])
            if "saveexec" in mn: self.w |= regs_of("exec")
            return
        raise ValueError("unknown instr " + text)

def need(p, c):
    n = 0
    isv = lambda S: {x for x in S if x[0] in "va"}
    iss = lambda S: {x for x in S if x[0] == "s"}
    if p.valu:
        pv = isv(p.w); ps = iss(p.w)
        if c.mfma and pv & c.r: n = max(n, 2)
        if (c.perm or c.dpp) and pv & c.r: n = max(n, 2)
        if c.rdlane and pv & c.r: n = max(n, 1)
        if p.trans and c.valu and pv & c.r: n = max(n, 1)
        if ps:
            if c.valu and ps & c.r: n = max(n, 4 if c.rdlane else 2)
            if c.vmem and ps & c.r: n = max(n, 5)
            if c.salu and ps & c.r: n = max(n, 1)
    if p.mfma:
        big = 12 if p.passes == 8 else 8
        if c.mfma:
            if p.w & c.srcAB: n = max(n, big)
            if p.w & c.srcC:
                if not (p.w == c.srcC and p.passes == c.passes): n = max(n, big - 2)
            elif p.w & c.w and not (p.passes == c.passes): n = max(n, big)
        elif c.valu:
            if p.w & (c.r | c.w): n = max(n, big)
            if p.srcC & c.w: n = max(n, 7 if p.passes == 8 else 3)
        elif c.vmem or c.ds:
            if p.w & (c.r | c.w): n = max(n, big)
            if p.srcC & c.w: n = max(n, 7 if p.passes == 8 else 3)
    if p.salu and ("s", 124) in p.w and c.ldsdma: n = max(n, 1)
    if p.wide_store and (p.wide_store & c.w): n = max(n, 2)
    return n

class Asm:
    def __init__(self): self.L = []
    def __call__(self, text):
        for t in text.split("\n"):
            t = t.strip()
            if t: self.L.append(t)
    def render(self, verbose=False):
        ins = [Ins(t) for t in self.L]
        out = []
        total_nops = 0
        srcs = {}
        for i, x in enumerate(ins):
            if x.branch: srcs.setdefault(x.branch, []).append(i)
        pad = [0] * len(ins)
        def look(c, i, acc, seen):
            best = 0
            j = i - 1
            while j >= 0 and acc < 14:
                x = ins[j]
                if x.kind == "label":
                    for s in srcs.get(x.label, []):
                        if (s, acc) not in seen:
                            seen.add((s, acc))
                            best = max(best, look(c, s, acc + 1 + 0, seen))
                    acc += pad[j]
                    j -= 1; continue
                if x.kind == "dir": j -= 1; continue
                if x.uncond: return best
                best = max(best, need(x, c) - acc)
                acc += (x.nop if x.nop else 1) + pad[j]
                j -= 1
            return best
        for it in range(2):
            for i, c in enumerate(ins):
                if c.kind != "ins": continue
                d = look(c, i, pad[i], set())
                if d > 0: pad[i] += d
        for i, x in enumerate(ins):
            p = pad[i]
            total_nops += p
            while p > 0:
                k = min(p, 16); out.append(f"s_nop {k-1}"); p -= k
            out.append(x.text)
        if verbose: print("inserted wait states:", total_nops)
        return "\n".join(out) + "\n"
```

```python
import sys, struct, math
from asmlib import Asm
NAME = "standalone__detection_seg_mask2former__vision"
def f2u(x): return struct.unpack("<I", struct.pack("<f", x))[0]
def hx(x): return "0x%08x" % (x & 0xffffffff)

RS = 12288; SL = 3072
WQ = 110592; WM = 129024; WK23 = 147456; FLAGS = 156672; QS = 156928; LDS_MAIN = 160000
WK01 = 5 * RS; WLAT = 7 * RS; LO2 = WLAT + 18432
F_P = 0; F_WL = 16; F_WA = 20; F_DONE = 24; F_CMB = 32; F_MX = 48
LOG2E = 1.4426950408889634
BOUND = 64.0
STAMP_OFF = 0x1000000

class Ctr:
    def __init__(self, a, name, mx): self.a = a; self.name = name; self.mx = mx; self.q = []
    def issue(self, tag): self.q.append(tag)
    def n_after(self, tag):
        idx = max(i for i, t in enumerate(self.q) if t == tag)
        return len(self.q) - 1 - idx, idx
    def wait(self, tag):
        if tag not in self.q: return
        n, idx = self.n_after(tag)
        n2 = min(n, self.mx)
        self.a(f"s_waitcnt {self.name}({n2})")
        self.q = self.q[len(self.q) - n2:] if n2 else []
    def wait_all(self):
        self.a(f"s_waitcnt {self.name}(0)"); self.q = []

def vr(b, n=1): return f"v{b}" if n == 1 else f"v[{b}:{b+n-1}]"
def sr(b, n=1): return f"s{b}" if n == 1 else f"s[{b}:{b+n-1}]"

class Gen:
    def __init__(self, stamps=False, depth=4, force_slow=False, safe=True):
        self.a = Asm(); self.stamps = stamps; self.depth = depth; self.nl = 0; self.force_slow = force_slow
        self.nst = 0; self.safe = safe
    def lab(self, s="L"):
        self.nl += 1; return f"{s}_{self.nl}"
    def stamp(self):
        if self.stamps:
            assert self.nst < 15
            self.a(f"s_memrealtime s[{64+2*self.nst}:{65+2*self.nst}]"); self.nst += 1
    def stamp_store(self, vt):
        if not self.stamps: return
        a = self.a
        a("s_waitcnt lgkmcnt(0)")
        a("s_lshl_b32 s60, s2, 3"); a("s_add_u32 s60, s60, s3"); a("s_lshl_b32 s60, s60, 6"); a(f"s_add_u32 s60, s60, {STAMP_OFF}")
        a("s_add_u32 s62, s38, s60"); a("s_addc_u32 s63, s39, 0")
        a("s_mov_b64 exec, 1")
        for i in range(16):
            a(f"v_mov_b32 v{vt+i}, " + (f"s{64+2*i}" if i < self.nst else "0"))
        a(f"v_mov_b32 v{vt+16}, 0")
        for i in range(4): a(f"global_store_dwordx4 v{vt+16}, v[{vt+4*i}:{vt+4*i+3}], s[62:63] offset:{16*i}")
        a("s_mov_b64 exec, -1")
    def srd(self, d, p, nbytes):
        a = self.a
        a(f"s_mov_b32 s{d}, s{p}"); a(f"s_mov_b32 s{d+1}, s{p+1}"); a(f"s_mov_b32 s{d+2}, {nbytes}"); a(f"s_mov_b32 s{d+3}, 0x20000")
    def poll(self, vflag, off, target, vt, st, sleep=1):
        a = self.a; L = self.lab("Lpoll"); D = self.lab("Lpd")
        a(f"{L}:")
        a(f"ds_read_b32 v{vt}, v{vflag} offset:{off}")
        a("s_waitcnt lgkmcnt(0)")
        a(f"v_readfirstlane_b32 s{st}, v{vt}")
        a(f"s_cmp_ge_u32 s{st}, {target}")
        a(f"s_cbranch_scc1 {D}")
        if sleep: a(f"s_sleep {sleep}")
        if self.safe: a("s_sub_u32 s15, s15, 1"); a(f"s_cbranch_scc1 {D}")
        a(f"s_branch {L}")
        a(f"{D}:")
    def flag_add(self, vflag, off, vone):
        a = self.a
        a("s_mov_b64 exec, 1"); a(f"ds_add_u32 v{vflag}, v{vone} offset:{off}"); a("s_mov_b64 exec, -1")

    def helper(self):
        a = self.a; vm = Ctr(a, "vmcnt", 63); lg = Ctr(a, "lgkmcnt", 15)
        self.nst = 2
        D = self.depth; NB = D + 1
        vDma, vHi, vGWE, vGWO, vGR0, vGR1, vKW0, vKW1, vFlag, vLoR, vWL, vOne, vT, vT2, vT3, vT4 = range(2, 18)
        vS1, vS2, vRs = 18, 20, 22
        X = 24; G = 48; G4 = 72; FB = 96
        BOP = 168; WOP = 204; DD = 228
        assert FB + NB * 12 <= BOP
        sHI, sLO, sW = 40, 44, 48
        sOff = 52
        sT, sT2, sLo, sLo2, sM = 57, 58, 59, 60, 61
        sOneLo, sOneHi = 4, 5
        self.srd(sHI, 18, 28311552); self.srd(sLO, 20, 7077888); self.srd(sW, 22, 18432)
        a(f"v_lshlrev_b32 v{vDma}, 4, v1")
        a(f"s_lshl_b32 s{sT}, s3, 12"); a(f"s_add_u32 s{sM}, s{sT}, {WLAT}"); a(f"s_mov_b32 m0, s{sM}")
        a(f"s_mul_i32 s{sT2}, s2, 18"); a(f"s_lshl_b32 s{sLo}, s3, 2"); a(f"s_add_u32 s{sLo}, s{sLo}, s{sT2}")
        for m in range(4):
            a(f"buffer_load_dwordx4 v{vDma}, {sr(sW,4)}, s{sT} offen offset:{1024*m} lds"); vm.issue("wl")
        Ls = self.lab()
        a("s_cmp_ge_u32 s3, 2"); a(f"s_cbranch_scc1 {Ls}")
        a(f"s_lshl_b32 s{sT}, s3, 10"); a(f"s_add_u32 s{sT}, s{sT}, 16384"); a(f"s_add_u32 s{sM}, s{sT}, {WLAT}"); a(f"s_mov_b32 m0, s{sM}")
        a("s_nop 0")
        a(f"buffer_load_dwordx4 v{vDma}, {sr(sW,4)}, s{sT} offen lds")
        a(f"{Ls}:")
        a(f"s_and_b32 s{sLo2}, s3, 1"); a(f"s_add_u32 s{sLo2}, s{sLo2}, s{sT2}"); a(f"s_add_u32 s{sLo2}, s{sLo2}, 16")
        a(f"s_mul_i32 s6, s3, {SL}")
        a(f"s_mul_i32 s{sT}, s{sLo}, 1536")
        for s in range(2):
            a(f"s_add_u32 s{sM}, s6, {(1+2*s)*RS}"); a(f"s_mov_b32 m0, s{sM}")
            if s: a(f"s_add_u32 s{sT}, s{sT}, 3072")
            else: a("s_nop 0")
            for m in range(3):
                a(f"buffer_load_dwordx4 v{vDma}, {sr(sLO,4)}, s{sT} offen offset:{1024*m} lds"); vm.issue("lo")
        a(f"s_mul_i32 s{sM}, s3, 1536"); a(f"s_add_u32 s{sM}, s{sM}, {LO2}"); a(f"s_mov_b32 m0, s{sM}")
        a(f"s_mul_i32 s{sT}, s{sLo2}, 1536")
        a(f"buffer_load_dwordx4 v{vDma}, {sr(sLO,4)}, s{sT} offen lds"); vm.issue("lo")
        a("s_mov_b32 exec_hi, 0")
        a(f"buffer_load_dwordx4 v{vDma}, {sr(sLO,4)}, s{sT} offen offset:1024 lds"); vm.issue("lo")
        a("s_mov_b32 exec_hi, -1")
        a(f"v_lshrrev_b32 v{vT}, 2, v1"); a(f"v_and_b32 v{vT2}, 3, v1")
        a(f"v_mul_u32_u24 v{vHi}, 192, v{vT}"); a(f"v_lshl_add_u32 v{vHi}, v{vT2}, 4, v{vHi}")
        for i in range(5):
            src = sLo if i < 4 else sLo2
            if 0 < i < 4: a(f"s_add_u32 s{sLo}, s{sLo}, 1")
            a(f"s_mul_hi_u32 s{sT}, s{src}, 0x0aaaaaab"); a(f"s_mul_i32 s{sT2}, s{sT}, 24"); a(f"s_sub_u32 s{sT2}, s{src}, s{sT2}")
            a(f"s_mul_i32 s{sT}, s{sT}, 147456"); a(f"s_mul_i32 s{sT2}, s{sT2}, 3072"); a(f"s_add_u32 s{sOff+i}, s{sT}, s{sT2}")
            if i == 0:
                self.h_issue(0, vm, vHi, sHI, sOff, FB, NB)
        a(f"s_lshr_b32 s{sT}, s3, 1"); a(f"s_mul_i32 s{sT}, s{sT}, 73728"); a(f"s_add_u32 s{sOff+4}, s{sOff+4}, s{sT}")
        a(f"v_mov_b32 v{vFlag}, {FLAGS}"); a(f"v_mov_b32 v{vOne}, 1")
        Ls = self.lab()
        a("s_cmp_lg_u32 s3, 0"); a(f"s_cbranch_scc1 {Ls}")
        a(f"v_lshl_add_u32 v{vT3}, v1, 2, v{vFlag}"); a(f"v_mov_b32 v{vT4}, 0"); a(f"ds_write_b32 v{vT3}, v{vT4}"); a("s_waitcnt lgkmcnt(0)")
        a(f"{Ls}:")
        a("s_barrier")
        a(f"v_lshrrev_b32 v{vT3}, 1, v{vT2}"); a(f"v_lshlrev_b32 v{vT3}, 1, v{vT3}"); a(f"v_lshl_add_u32 v{vT3}, v{vT2}, 2, v{vT3}")
        a(f"v_xor_b32 v{vT3}, v{vT3}, v{vT}"); a(f"v_lshl_add_u32 v{vT3}, v{vT2}, 4, v{vT3}"); a(f"v_lshlrev_b32 v{vT3}, 4, v{vT3}")
        a(f"v_add_u32 v{vKW0}, s6, v{vT3}"); a(f"v_add_u32 v{vKW1}, {5*RS}, v{vKW0}")
        a(f"v_lshrrev_b32 v{vT}, 1, v{vT}")
        self.swap01(vT, vT3, vT4)
        a(f"v_lshlrev_b32 v{vT2}, 1, v{vT2}"); a(f"v_xor_b32 v{vT3}, v{vT3}, v{vT2}")
        a(f"v_mul_u32_u24 v{vT}, 0x180, v{vT}"); a(f"v_add_u32 v{vT}, s6, v{vT}")
        a(f"v_lshl_add_u32 v{vGR0}, v{vT3}, 4, v{vT}"); a(f"v_xor_b32 v{vGR1}, 16, v{vGR0}")
        a(f"v_and_b32 v{vT}, 7, v1"); self.swap01(vT, vT3, vT4)
        a(f"v_lshrrev_b32 v{vT2}, 4, v1"); a(f"v_xor_b32 v{vT3}, v{vT3}, v{vT2}")
        a(f"v_mul_u32_u24 v{vT}, 0x180, v{vT}"); a(f"v_bfe_u32 v{vT4}, v1, 3, 1"); a(f"v_mul_u32_u24 v{vT4}, {2*RS}, v{vT4}")
        a(f"v_add3_u32 v{vT}, v{vT}, v{vT4}, s6"); a(f"v_lshl_add_u32 v{vGWE}, v{vT3}, 4, v{vT}"); a(f"v_xor_b32 v{vGWO}, 64, v{vGWE}")
        a(f"v_and_b32 v{vT}, 15, v1"); a(f"v_mul_u32_u24 v{vT3}, 192, v{vT}"); a(f"v_lshl_add_u32 v{vT3}, v{vT2}, 4, v{vT3}")
        a(f"v_add_u32 v{vLoR}, s6, v{vT3}")
        a(f"s_mul_i32 s{sT}, s3, 1536"); a(f"s_add_u32 s{sT}, s{sT}, {LO2}"); a(f"v_add_u32 v{vT4}, s{sT}, v{vT3}")
        a(f"v_lshrrev_b32 v{vT3}, 2, v{vT}"); a(f"v_lshl_add_u32 v{vT3}, v{vT2}, 3, v{vT3}"); a(f"v_mul_u32_u24 v{vT3}, 192, v{vT3}")
        a(f"v_and_b32 v{vT}, 3, v1"); a(f"v_lshl_add_u32 v{vT3}, v{vT}, 3, v{vT3}"); a(f"v_add_u32 v{vWL}, {WLAT}, v{vT3}")
        a(f"s_mov_b32 s{sOneLo}, 0x00003f80"); a(f"s_mov_b32 s{sOneHi}, 0x3f800000")
        vm.wait("wl")
        self.flag_add(vFlag, F_WL, vOne)
        vm.wait("lo")
        self.stamp()
        nissued = 1
        if D >= 2: self.h_issue(1, vm, vHi, sHI, sOff, FB, NB); nissued = 2
        for s in range(3):
            for ks in range(3):
                r = BOP + (s * 3 + ks) * 4
                if s < 2: a(f"ds_read_b128 {vr(r,4)}, v{vLoR} offset:{(1+2*s)*RS + ks*64}")
                else: a(f"ds_read_b128 {vr(r,4)}, v{vT4} offset:{ks*64}")
        self.poll(vFlag, F_WL, 4, vT, sT)
        def wread(t):
            for ks in range(3):
                for e in range(2):
                    r = WOP + (t & 1) * 12 + ks * 4 + 2 * e
                    a(f"ds_read_b64_tr_b16 {vr(r,2)}, v{vWL} offset:{(32*ks + 4*e)*192 + t*32}"); lg.issue(f"w{t}")
        def gwrite(t):
            for s in range(3):
                base = (0, 4 * RS, RS)[s]
                a(f"ds_write_b128 v{vGWO if t&1 else vGWE}, {vr(DD + (t&1)*12 + s*4, 4)} offset:{base + (t>>1)*128}"); lg.issue(f"g{t}")
        wread(0); wread(1)
        for t in range(6):
            lg.wait(f"w{t}")
            for ks in range(3):
                for s in range(3):
                    d = vr(DD + (t & 1) * 12 + s * 4, 4)
                    a(f"v_mfma_f32_16x16x32_bf16 {d}, {vr(WOP + (t&1)*12 + ks*4, 4)}, {vr(BOP + (s*3+ks)*4, 4)}, {d if ks else 0}")
                if ks == 1 and t > 0: gwrite(t - 1)
            if t + 2 < 6: wread(t + 2)
            if t in (2,) and nissued < min(D, 9): self.h_issue(nissued, vm, vHi, sHI, sOff, FB, NB); nissued += 1
        gwrite(5)
        self.flag_add(vFlag, F_DONE, vOne); lg.issue("x")
        while nissued < min(D, 9): self.h_issue(nissued, vm, vHi, sHI, sOff, FB, NB); nissued += 1
        def gread(dst, off):
            for ks in range(3):
                for e in range(2):
                    a(f"ds_read_b128 {vr(dst + ks*8 + 4*e, 4)}, v{vGR1 if e else vGR0} offset:{off + ks*128}"); lg.issue("gr")
        gread(G, 0); gread(G4, RS)
        self.stamp()
        for r in range(9):
            g = G4 if r == 8 else G
            fb = FB + (r % NB) * 12
            lg.wait("gr")
            vm.wait(f"u{r}")
            if r in (0, 4, 8): self.stamp()
            for ks in range(3):
                for i in range(4):
                    a(f"v_dot2_f32_bf16 v{X+ks*8+2*i}, v{fb+ks*4+i}, s{sOneLo}, v{g+ks*8+2*i}")
                    a(f"v_dot2_f32_bf16 v{X+ks*8+2*i+1}, v{fb+ks*4+i}, s{sOneHi}, v{g+ks*8+2*i+1}")
            if nissued < 9: self.h_issue(nissued, vm, vHi, sHI, sOff, FB, NB); nissued += 1
            if r in (1, 3, 5):
                a(f"v_add_u32 v{vGR0}, {2*RS}, v{vGR0}"); a(f"v_add_u32 v{vGR1}, {2*RS}, v{vGR1}")
                gread(G, 0)
            a(f"v_pk_add_f32 {vr(vS1,2)}, {vr(X,2)}, {vr(X+2,2)}"); a(f"v_pk_mul_f32 {vr(vS2,2)}, {vr(X,2)}, {vr(X,2)}")
            a(f"v_pk_fma_f32 {vr(vS2,2)}, {vr(X+2,2)}, {vr(X+2,2)}, {vr(vS2,2)}")
            for k in range(2, 12):
                a(f"v_pk_add_f32 {vr(vS1,2)}, {vr(vS1,2)}, {vr(X+2*k,2)}")
                a(f"v_pk_fma_f32 {vr(vS2,2)}, {vr(X+2*k,2)}, {vr(X+2*k,2)}, {vr(vS2,2)}")
            a(f"v_add_f32 v{vS1}, v{vS1}, v{vS1+1}"); a(f"v_add_f32 v{vS2}, v{vS2}, v{vS2+1}")
            for qp in ("[1,0,3,2]", "[2,3,0,1]"):
                a(f"v_add_f32_dpp v{vS1}, v{vS1}, v{vS1} quad_perm:{qp} row_mask:0xf bank_mask:0xf")
                a(f"v_add_f32_dpp v{vS2}, v{vS2}, v{vS2} quad_perm:{qp} row_mask:0xf bank_mask:0xf")
            a(f"v_mul_f32 v{vS1}, {hx(f2u(1/96))}, v{vS1}")
            a(f"v_mul_f32 v{vS1+1}, v{vS1}, v{vS1}")
            a(f"v_mul_f32 v{vS2}, {hx(f2u(1/96))}, v{vS2}")
            a(f"v_sub_f32 v{vS2}, v{vS2}, v{vS1+1}")
            a(f"v_max_f32 v{vS2}, 0, v{vS2}")
            a(f"v_add_f32 v{vS2}, {hx(f2u(1e-5))}, v{vS2}")
            a(f"v_rsq_f32 v{vRs}, v{vS2}")
            a(f"v_mul_f32_e64 v{vRs+1}, -v{vS1}, v{vRs}")
            if r == 5: self.poll(vFlag, F_DONE, 8, vT, sT); lg.q = []
            kw = vKW0 if r < 5 else vKW1; ko = (r if r < 5 else r - 5) * RS
            for ks in range(3):
                for k in range(4):
                    x = X + ks * 8 + 2 * k
                    a(f"v_pk_fma_f32 {vr(x,2)}, {vr(x,2)}, {vr(vRs,2)}, {vr(vRs,2)} op_sel:[0,0,1] op_sel_hi:[1,0,1]")
                for k in range(4):
                    x = X + ks * 8 + 2 * k
                    a(f"v_cvt_pk_bf16_f32 v{X+ks*8+k}, v{x}, v{x+1}")
                a(f"ds_write_b128 v{kw}, {vr(X+ks*8,4)} offset:{ko + ks*1024}"); lg.issue("kw")
            a(f"v_mov_b32 v{vT}, {r+1}")
            a(f"v_lshl_add_u32 v{vT2}, s3, 2, v{vFlag}") if r == 0 else None
            a("s_mov_b64 exec, 1"); a(f"ds_write_b32 v{vT2}, v{vT} offset:{F_P}"); a("s_mov_b64 exec, -1"); lg.issue("fl")
        self.stamp()
        self.stamp_store(24)
        a("s_endpgm")
    def h_issue(self, u, vm, vHi, sHI, sOff, FB, NB):
        a = self.a
        i = u // 2 if u < 8 else 4
        if u < 8 and (u & 1): a(f"s_add_u32 s{sOff+i}, s{sOff+i}, 73728")
        for ks in range(3):
            r = FB + (u % NB) * 12 + ks * 4
            a(f"buffer_load_dwordx4 {vr(r,4)}, v{vHi}, {sr(sHI,4)}, s{sOff+i} offen offset:{ks*64}"); vm.issue(f"u{u}")
    def swap01(self, src, dst, tmp):
        a = self.a
        a(f"v_and_b32 v{dst}, 4, v{src}"); a(f"v_bfe_u32 v{tmp}, v{src}, 1, 1"); a(f"v_or_b32 v{dst}, v{dst}, v{tmp}")
        a(f"v_and_b32 v{tmp}, 1, v{src}"); a(f"v_lshl_or_b32 v{dst}, v{tmp}, 1, v{dst}")

    def attention(self):
        a = self.a; vm = Ctr(a, "vmcnt", 63); lg = Ctr(a, "lgkmcnt", 15)
        self.nst = 2
        vDma, vFlag, vOne, vT, vT2, vT3, vT4, vT5, vSA0, vSA1, vUA0, vUA1, vL, vM, vPF, vOnes = range(2, 18)
        AB = 20; U = 44; S = 92; P = 108; SA = 116; UA = 140; WV = 164
        vA0, vA1, vA2, vA3 = 236, 237, 238, 239
        sW = 40; sA, sHP, sKH, sT, sM, sKn, sSlow = 44, 45, 46, 47, 48, 49, 50
        a(f"s_sub_u32 s{sA}, s3, 4"); a(f"s_lshr_b32 s{sHP}, s{sA}, 1"); a(f"s_and_b32 s{sKH}, s{sA}, 1")
        a(f"v_lshlrev_b32 v{vDma}, 4, v1")
        def dma_mat(p, base):
            self.srd(sW, p, 18432)
            a(f"s_lshl_b32 s{sT}, s{sA}, 12"); a(f"s_add_u32 s{sM}, s{sT}, {base}"); a(f"s_mov_b32 m0, s{sM}"); a("s_nop 0")
            for m in range(4): a(f"buffer_load_dwordx4 v{vDma}, {sr(sW,4)}, s{sT} offen offset:{1024*m} lds")
            Ls = self.lab()
            a(f"s_cmp_ge_u32 s{sA}, 2"); a(f"s_cbranch_scc1 {Ls}")
            a(f"s_lshl_b32 s{sT}, s{sA}, 10"); a(f"s_add_u32 s{sT}, s{sT}, 16384"); a(f"s_add_u32 s{sM}, s{sT}, {base}"); a(f"s_mov_b32 m0, s{sM}"); a("s_nop 0")
            a(f"buffer_load_dwordx4 v{vDma}, {sr(sW,4)}, s{sT} offen lds")
            a(f"{Ls}:")
        a("s_barrier")
        Ls = self.lab()
        self.srd(sW, 16, 3072)
        a(f"s_cmp_eq_u32 s{sA}, 0"); a(f"s_cbranch_scc1 {Ls}")
        a(f"s_lshl_b32 s{sT}, s{sA}, 10"); a(f"s_sub_u32 s{sT}, s{sT}, 1024"); a(f"s_add_u32 s{sM}, s{sT}, {QS}"); a(f"s_mov_b32 m0, s{sM}"); a("s_nop 0")
        a(f"buffer_load_dwordx4 v{vDma}, {sr(sW,4)}, s{sT} offen lds")
        a(f"{Ls}:")
        dma_mat(24, WQ); dma_mat(32, WM)
        self.srd(sW, 26, 18432)
        a(f"s_mul_i32 s{sT}, s{sKH}, 5120"); a(f"s_mul_i32 s51, s{sHP}, {WK23-WK01}"); a(f"s_add_u32 s51, s51, {WK01}")
        a(f"s_add_u32 s{sM}, s51, s{sT}"); a(f"s_mov_b32 m0, s{sM}"); a(f"s_mul_i32 s52, s{sHP}, 9216"); a(f"s_add_u32 s{sT}, s{sT}, s52")
        for m in range(4): a(f"buffer_load_dwordx4 v{vDma}, {sr(sW,4)}, s{sT} offen offset:{1024*m} lds")
        Ls = self.lab()
        a(f"s_cmp_lg_u32 s{sKH}, 0"); a(f"s_cbranch_scc1 {Ls}")
        a(f"s_add_u32 s{sM}, s{sM}, 4096"); a(f"s_mov_b32 m0, s{sM}"); a(f"s_add_u32 s{sT}, s{sT}, 4096")
        a(f"buffer_load_dwordx4 v{vDma}, {sr(sW,4)}, s{sT} offen lds")
        a(f"{Ls}:")
        a(f"v_mov_b32 v{vFlag}, {FLAGS}"); a(f"v_mov_b32 v{vOne}, 1"); a(f"v_mov_b32 v{vOnes}, 0x3f803f80"); a(f"v_mov_b32 v{vL}, 0"); a(f"v_mov_b32 v{vM}, 0")
        a(f"s_lshl_b32 s{sT}, s{sKH}, 3"); a(f"v_add_u32 v{vPF}, s{sT}, v{vFlag}")
        a(f"s_mul_i32 s53, s{sKH}, 6144")
        a(f"v_and_b32 v{vT}, 15, v1"); a(f"v_lshrrev_b32 v{vT2}, 5, v1"); a(f"v_bfe_u32 v{vT3}, v1, 4, 1")
        a(f"v_mul_u32_u24 v{vT4}, {SL}, v{vT3}"); a(f"v_add_u32 v{vT4}, s53, v{vT4}")
        a(f"v_lshlrev_b32 v{vT5}, 2, v{vT2}"); a(f"v_xor_b32 v{vT5}, v{vT5}, v{vT}")
        a(f"v_lshl_add_u32 v{vSA0}, v{vT2}, 4, v{vT5}"); a(f"v_lshl_add_u32 v{vSA0}, v{vSA0}, 4, v{vT4}")
        a(f"v_xor_b32 v{vT5}, 10, v{vT5}")
        a(f"v_lshl_add_u32 v{vSA1}, v{vT2}, 4, v{vT5}"); a(f"v_add_u32 v{vSA1}, 32, v{vSA1}"); a(f"v_lshl_add_u32 v{vSA1}, v{vSA1}, 4, v{vT4}")
        a(f"v_bfe_u32 v{vT4}, v1, 1, 1"); a(f"v_lshl_add_u32 v{vT4}, v{vT3}, 1, v{vT4}")
        a(f"v_bfe_u32 v{vT5}, v1, 2, 2"); a(f"v_lshl_add_u32 v{vT5}, v{vT2}, 2, v{vT5}")
        a(f"v_lshlrev_b32 v{vA0}, 1, v{vT3}"); a(f"v_lshl_add_u32 v{vA0}, v{vT4}, 2, v{vA0}")
        a(f"v_xor_b32 v{vT5}, v{vT5}, v{vA0}"); a(f"v_lshl_add_u32 v{vT5}, v{vT4}, 4, v{vT5}"); a(f"v_lshlrev_b32 v{vT5}, 4, v{vT5}")
        a(f"v_and_b32 v{vA0}, 1, v1"); a(f"v_lshl_add_u32 v{vT5}, v{vA0}, 3, v{vT5}"); a(f"v_add_u32 v{vUA0}, s53, v{vT5}"); a(f"v_xor_b32 v{vUA1}, 128, v{vUA0}")
        a(f"v_mul_u32_u24 v{vA0}, 192, v{vT}"); a(f"v_lshl_add_u32 v{vA0}, v{vT2}, 4, v{vA0}"); a(f"v_add_u32 v{vA0}, {QS}, v{vA0}")
        a(f"v_and_b32 v{vT4}, 1, v1"); a(f"v_lshlrev_b32 v{vT4}, 3, v{vT4}"); a(f"v_bfe_u32 v{vT5}, v1, 1, 1"); a(f"v_lshl_add_u32 v{vT4}, v{vT5}, 2, v{vT4}")
        a(f"v_lshl_add_u32 v{vT4}, v{vT3}, 4, v{vT4}")
        a(f"v_bfe_u32 v{vT5}, v1, 2, 2"); a(f"v_lshl_add_u32 v{vT5}, v{vT2}, 3, v{vT5}")
        a(f"v_mul_u32_u24 v{vA3}, 192, v{vT5}"); a(f"v_lshl_add_u32 v{vA3}, v{vT4}, 1, v{vA3}"); a(f"v_add_u32 v{vA3}, {WM}, v{vA3}")
        a(f"s_mul_i32 s{sT}, s{sHP}, 9216"); a(f"s_add_u32 s{sT}, s{sT}, {WQ}")
        a(f"v_mul_u32_u24 v{vT5}, 48, v{vT5}"); a(f"v_add_u32 v{vT5}, s{sT}, v{vT5}")
        a(f"v_lshl_add_u32 v{vA1}, v{vT4}, 1, v{vT5}"); a(f"v_add_u32 v{vA2}, 4560, v{vA1}")
        a(f"v_cmp_le_u32 vcc, 24, v{vT4}"); a(f"v_cndmask_b32 v{vA1}, v{vA1}, v{vA2}, vcc")
        a(f"v_and_b32 v{vT4}, 15, v{vT4}"); a(f"v_lshl_add_u32 v{vA2}, v{vT4}, 1, v{vT5}"); a(f"v_add_u32 v{vA2}, {4608+16}, v{vA2}")
        a(f"v_and_b32 v{vT4}, 19, v1"); a(f"v_bfe_u32 v{vT5}, v1, 2, 1"); a(f"v_lshl_or_b32 v{vT4}, v{vT5}, 3, v{vT4}")
        a(f"v_bfe_u32 v{vT5}, v1, 3, 1"); a(f"v_lshl_or_b32 v{vT4}, v{vT5}, 2, v{vT4}")
        a(f"v_mul_u32_u24 v{vT4}, 48, v{vT4}"); a(f"v_add_u32 v{vT4}, s51, v{vT4}")
        a(f"v_mul_u32_u24 v{vT5}, 4576, v{vT2}"); a(f"v_add3_u32 v{vT5}, v{vT5}, v{vT4}, 32")
        a(f"v_lshl_add_u32 v{vT4}, v{vT2}, 4, v{vT4}")
        sc0, sc1, sc2 = P, P + 1, P + 2
        a(f"v_cmp_eq_u32 vcc, 0, v{vT3}"); a(f"v_cndmask_b32 v{sc0}, 0, 2.0, vcc"); a(f"v_cndmask_b32 v{sc2}, 2.0, 0, vcc")
        a(f"v_cmp_eq_u32 vcc, v{vT2}, v{vT3}"); a(f"v_cndmask_b32 v{sc1}, 0, 2.0, vcc")
        a("s_waitcnt vmcnt(0)")
        self.stamp()
        self.flag_add(vFlag, F_WA, vOne)
        self.poll(vFlag, F_WA, 4, vT, sT)
        qB = SA; DQ = WV; DA = U; OP = WV + 32; QB = UA
        for ks in range(6): a(f"ds_read_b128 {vr(qB+4*ks,4)}, v{vA0} offset:{ks*32}"); lg.issue("q")
        jobs = []
        for TQ in range(2):
            for ks in range(6): jobs.append(("q", TQ, ks))
        for TA in range(3):
            for ks in range(6): jobs.append(("m", TA, ks))
        for TA in range(3):
            for s in range(3): jobs.append(("k", TA, s))
        NR = 8
        def rd(n):
            k, T, ks = jobs[n]; r = OP + (n % NR) * 4
            if k == "q":
                for e in range(2): a(f"ds_read_b64_tr_b16 {vr(r+2*e,2)}, v{vA2 if T else vA1} offset:{ks*768 + e*192}"); lg.issue(n)
            elif k == "m":
                for e in range(2): a(f"ds_read_b64_tr_b16 {vr(r+2*e,2)}, v{vA3} offset:{ks*3072 + e*768 + T*64}"); lg.issue(n)
            else:
                if ks == 1: a(f"ds_read_b128 {vr(r,4)}, v{vT5} offset:{T*1536}")
                else: a(f"ds_read_b128 {vr(r,4)}, v{vT4} offset:{T*1536 + (4624 if ks == 2 else 0)}")
                lg.issue(n)
        AH = 5
        for n in range(AH): rd(n)
        for n, (k, T, ks) in enumerate(jobs):
            if n + AH < len(jobs): rd(n + AH)
            lg.wait(n)
            r = vr(OP + (n % NR) * 4, 4)
            if k == "q": d = vr(DQ + 16 * T, 16); a(f"v_mfma_f32_32x32x16_bf16 {d}, {r}, {vr(qB+4*ks,4)}, {d if ks else 0}")
            elif k == "m": d = vr(DA + 16 * T, 16); a(f"v_mfma_f32_32x32x16_bf16 {d}, {r}, {vr(qB+4*ks,4)}, {d if ks else 0}")
            else: d = vr(DA + 16 * T, 16); a(f"v_mfma_f32_32x32x16_bf16 {d}, {r}, {vr(QB+4*ks,4)}, {d}")
            if 14 <= n < 26:
                jn = n - 14; s = jn // 4; p = jn % 4; x = DQ + 8 * s + 2 * p
                a(f"v_mul_f32 v{x}, v{P+s}, v{x}"); a(f"v_mul_f32 v{x+1}, v{P+s}, v{x+1}"); a(f"v_cvt_pk_bf16_f32 v{QB+4*s+p}, v{x}, v{x+1}")
        self.flag_add(vFlag, F_DONE, vOne); lg.q = []
        a(f"s_mov_b32 s54, {hx(f2u(96**-0.5 * LOG2E))}"); a("s_mov_b32 s55, s54")
        a(f"v_mov_b32 v{vT}, 0")
        for i in range(24):
            x = DA + 2 * i
            a(f"v_pk_mul_f32 {vr(x,2)}, {vr(x,2)}, s[54:55]"); a(f"v_cvt_pk_bf16_f32 v{AB+i}, v{x}, v{x+1}")
        for i in range(24): a(f"v_dot2_f32_bf16 v{vT}, v{AB+i}, v{AB+i}, v{vT}")
        a(f"v_mov_b32 v{vT2}, v{vT}"); a(f"v_permlane32_swap_b32 v{vT}, v{vT2}"); a(f"v_add_f32 v{vT}, v{vT}, v{vT2}")
        thr = (BOUND / 1.01) ** 2 / 96.0
        if self.force_slow: thr = -1.0
        a(f"v_cmp_nge_f32 vcc, {hx(f2u(thr))}, v{vT}")
        a(f"s_cmp_lg_u64 vcc, 0"); a(f"s_cselect_b32 s{sSlow}, 1, 0")
        for i in range(48): a(f"v_mov_b32 v{U+i}, 0")
        a(f"s_mov_b32 s{sKn}, 0")
        self.stamp()
        LSLOW = self.lab("Lslow"); LEPI = self.lab("Lepi")
        a(f"s_cmp_eq_u32 s{sSlow}, 1"); a(f"s_cbranch_scc1 {LSLOW}")
        def wait_tile(r):
            L = self.lab("Lw"); Dn = self.lab("Lwd")
            a(f"{L}:"); a(f"s_cmp_gt_u32 s{sKn}, {r}"); a(f"s_cbranch_scc1 {Dn}")
            a(f"ds_read_b64 {vr(vT4,2)}, v{vPF} offset:{F_P}"); a("s_waitcnt lgkmcnt(0)")
            a(f"v_min_u32 v{vT4}, v{vT4}, v{vT5}"); a(f"v_readfirstlane_b32 s{sKn}, v{vT4}")
            if self.safe: a("s_sub_u32 s15, s15, 1"); a(f"s_cbranch_scc1 {Dn}")
            a(f"s_branch {L}")
            a(f"{Dn}:")
        def s_stage(lg):
            for ks in range(6): a(f"ds_read_b128 {vr(SA+4*ks,4)}, v{vSA1 if ks&1 else vSA0} offset:{(ks>>1)*1024}"); lg.issue(f"s{ks}")
        def s_mfma(lg, with_tr):
            for ks in range(6):
                lg.wait(f"s{ks}")
                a(f"v_mfma_f32_32x32x16_bf16 {vr(S,16)}, {vr(SA+4*ks,4)}, {vr(AB+4*ks,4)}, {vr(S,16) if ks else 0}")
                if with_tr:
                    s, T = ks // 3, ks % 3
                    for e in range(2): a(f"ds_read_b64_tr_b16 {vr(UA+(s*3+T)*4+2*e,2)}, v{vUA1 if e else vUA0} offset:{s*3072 + T*1024}"); lg.issue(f"t{s}{T}")
        def adv(sgn=1):
            for v in (vSA0, vSA1, vUA0, vUA1): a(f"v_add_u32 v{v}, {RS if sgn > 0 else hx(-9*RS)}, v{v}")
        def wv_dma():
            self.poll(vFlag, F_DONE, 8, vT, sT)
            self.srd(sW, 28, 18432)
            a(f"s_mul_i32 s56, s{sA}, 9216"); a(f"s_add_u32 s56, s56, {WQ}"); a(f"s_mov_b32 s{sM}, s56")
            a(f"s_mul_i32 s{sT}, s{sHP}, 9216")
            for m in range(9):
                if m % 4 == 0:
                    if m: a(f"s_add_u32 s{sM}, s{sM}, 4096"); a(f"s_add_u32 s{sT}, s{sT}, 4096")
                    a(f"s_mov_b32 m0, s{sM}"); a("s_nop 0")
                a(f"buffer_load_dwordx4 v{vDma}, {sr(sW,4)}, s{sT} offen offset:{1024*(m%4)} lds")
        def wv_regs():
            a("s_waitcnt vmcnt(0)")
            a(f"v_bfe_u32 v{vT}, v1, 2, 2"); a(f"v_lshrrev_b32 v{vT2}, 5, v1"); a(f"v_lshl_add_u32 v{vT}, v{vT2}, 2, v{vT}")
            a(f"v_mul_u32_u24 v{vT}, 48, v{vT}"); a(f"v_add_u32 v{vT}, s56, v{vT}")
            a(f"v_and_b32 v{vT2}, 3, v1"); a(f"v_lshl_add_u32 v{vA0}, v{vT2}, 3, v{vT}")
            a(f"v_add_u32 v{vA2}, {4608+16}, v{vA0}")
            a(f"v_add_u32 v{vA1}, 32, v{vA0}"); a(f"v_add_u32 v{vA3}, {4608-16}, v{vA0}")
            a(f"v_cmp_le_u32 vcc, 2, v{vT2}"); a(f"v_cndmask_b32 v{vA1}, v{vA1}, v{vA3}, vcc")
            n = 0
            for tau in range(3):
                for sp in range(6):
                    for e in range(2):
                        a(f"ds_read_b64_tr_b16 {vr(WV+(tau*6+sp)*4+2*e,2)}, v{(vA0,vA1,vA2)[tau]} offset:{(16*sp + 8*e)*48}")
            a(f"v_bfe_u32 v{vT}, v1, 4, 1"); a(f"v_bfe_u32 v{vT2}, v1, 3, 1")
            a(f"v_add_u32 v{vA0}, -1, v{vT}")
            a(f"v_sub_u32 v{vA2}, 0, v{vT}")
            a(f"v_xor_b32 v{vA1}, v{vT}, v{vT2}"); a(f"v_add_u32 v{vA1}, -1, v{vA1}")
            a("s_waitcnt lgkmcnt(0)")
            for tau in range(3):
                for i in range(24): a(f"v_and_b32 v{WV+tau*24+i}, v{(vA0,vA1,vA2)[tau]}, v{WV+tau*24+i}")
        def tile(r, slow):
            lg = Ctr(a, "lgkmcnt", 15)
            s_stage(lg); s_mfma(lg, True); adv()
            for s in range(2):
                for i in range(8):
                    x = S + 8 * s + i
                    if slow: a(f"v_sub_f32 v{x}, v{x}, v{vM}")
                    a(f"v_exp_f32 v{x}, v{x}")
                for i in range(4): a(f"v_cvt_pk_bf16_f32 v{P+4*s+i}, v{S+8*s+2*i}, v{S+8*s+2*i+1}")
                for T in range(3):
                    lg.wait(f"t{s}{T}")
                    a(f"v_mfma_f32_32x32x16_bf16 {vr(U+16*T,16)}, {vr(UA+(s*3+T)*4,4)}, {vr(P+4*s,4)}, {vr(U+16*T,16)}")
                for i in range(4): a(f"v_dot2_f32_bf16 v{vL}, v{P+4*s+i}, v{vOnes}, v{vL}")
        for r in range(9):
            wait_tile(r)
            if r in (0, 4, 8): self.stamp()
            tile(r, False)
            if r == 1: wv_dma()
            if r == 5: wv_regs()
        nst_save = self.nst
        a(f"s_branch {LEPI}")
        a(f"{LSLOW}:")
        a(f"v_mov_b32 v{vM}, 0xff800000")
        for r in range(9):
            wait_tile(r)
            lg = Ctr(a, "lgkmcnt", 15)
            s_stage(lg); s_mfma(lg, False); adv()
            for i in range(8): a(f"v_max3_f32 v{vM}, v{S+2*i}, v{S+2*i+1}, v{vM}")
        adv(-1)
        a(f"v_mov_b32 v{vT2}, v{vM}"); a(f"v_permlane32_swap_b32 v{vM}, v{vT2}"); a(f"v_max_f32 v{vM}, v{vM}, v{vT2}")
        wv_dma(); wv_regs()
        a(f"v_lshlrev_b32 v{vT}, 2, v1"); a(f"v_add_u32 v{vT2}, s56, v{vT}"); a(f"ds_write_b32 v{vT2}, v{vM} offset:8192")
        a(f"s_lshl_b32 s{sT}, s{sHP}, 2"); a(f"v_add_u32 v{vT3}, s{sT}, v{vFlag}")
        self.flag_add(vT3, F_MX, vOne)
        self.poll(vT3, F_MX, 2, vT4, sT)
        a(f"s_xor_b32 s{sT}, s{sA}, 1"); a(f"s_mul_i32 s{sT}, s{sT}, 9216"); a(f"s_add_u32 s{sT}, s{sT}, {WQ}")
        a(f"v_add_u32 v{vT2}, s{sT}, v{vT}"); a(f"ds_read_b32 v{vT2}, v{vT2} offset:8192"); a("s_waitcnt lgkmcnt(0)")
        a(f"v_max_f32 v{vM}, v{vM}, v{vT2}")
        for r in range(9): tile(r, True)
        a(f"{LEPI}:")
        self.nst = nst_save
        self.stamp()
        PB = SA; DP = S
        for i in range(24): a(f"v_cvt_pk_bf16_f32 v{PB+i}, v{U+2*i}, v{U+2*i+1}")
        for sp in range(6):
            for tau in range(3):
                d = vr(DP + 4 * tau, 4)
                a(f"v_mfma_f32_16x16x32_bf16 {d}, {vr(WV+(tau*6+sp)*4,4)}, {vr(PB+4*sp,4)}, {d if sp else 0}")
            if sp == 0:
                a(f"v_mov_b32 v{vT}, v{vL}"); a(f"v_permlane32_swap_b32 v{vL}, v{vT}"); a(f"v_add_f32 v{DP+12}, v{vL}, v{vT}")
            if sp == 1:
                a(f"v_mov_b32 v{DP+13}, v{DP+12}"); a(f"v_permlane16_swap_b32 v{DP+12}, v{DP+13}")
            if sp == 2:
                a(f"v_mov_b32 v{DP+14}, v{vM}"); a(f"v_mov_b32 v{DP+15}, v{vM}"); a(f"v_permlane16_swap_b32 v{DP+14}, v{DP+15}")
            if sp == 3:
                a(f"s_or_b32 s{sT}, s{sA}, 1"); a(f"s_mul_i32 s{sT}, s{sT}, 9216"); a(f"s_add_u32 s{sT}, s{sT}, {WQ}"); a(f"v_add_u32 v{vT2}, s{sT}, v{vDma}")
                a(f"s_lshl_b32 s{sT}, s{sHP}, 2"); a(f"v_add_u32 v{vT3}, s{sT}, v{vFlag}")
        LK0 = self.lab("Lk0")
        a(f"s_cmp_eq_u32 s{sKH}, 0"); a(f"s_cbranch_scc1 {LK0}")
        for i in range(4): a(f"ds_write_b128 v{vT2}, {vr(DP+4*i,4)} offset:{1024*i}")
        self.flag_add(vT3, F_CMB, vOne)
        n0 = self.nst
        self.stamp(); self.stamp_store(44)
        a("s_endpgm")
        a(f"{LK0}:")
        self.nst = n0
        a(f"v_and_b32 v{vT4}, 15, v1"); a(f"v_lshlrev_b32 v{vT4}, 16, v{vT4}"); a(f"v_lshrrev_b32 v{vT5}, 4, v1"); a(f"v_lshl_add_u32 v{vT4}, v{vT5}, 5, v{vT4}")
        a(f"s_lshl_b32 s57, s2, 8"); a(f"s_lshl_b32 s58, s{sHP}, 7"); a("s_add_u32 s57, s57, s58")
        self.srd(sW, 38, 1 << 20)
        self.poll(vT3, F_CMB, 1, vT, sT, sleep=0)
        for i in range(4): a(f"ds_read_b128 {vr(UA+4*i,4)}, v{vT2} offset:{1024*i}")
        a(f"v_mov_b32 v{vT}, s{sSlow}")
        a(f"v_cmp_eq_u32 vcc, 1, v{vT5}"); a(f"v_cndmask_b32 v{DP+14}, v{vT}, v{DP+14}, vcc"); a(f"v_cndmask_b32 v{DP+15}, v{vT}, v{DP+15}, vcc")
        a(f"v_cmp_eq_u32 vcc, 0, v{vT5}")
        a("s_waitcnt lgkmcnt(0)")
        for i in range(7): a(f"v_pk_add_f32 {vr(DP+2*i,2)}, {vr(DP+2*i,2)}, {vr(UA+2*i,2)}")
        for i in range(6): a(f"v_cvt_pk_bf16_f32 v{P+i}, v{DP+2*i}, v{DP+2*i+1}")
        a(f"v_cndmask_b32 v{P+6}, v{DP+14}, v{DP+12}, vcc"); a(f"v_cndmask_b32 v{P+7}, v{DP+15}, v{DP+13}, vcc")
        a(f"buffer_store_dwordx4 {vr(P,4)}, v{vT4}, {sr(sW,4)}, s57 offen")
        a(f"buffer_store_dwordx4 {vr(P+4,4)}, v{vT4}, {sr(sW,4)}, s57 offen offset:16")
        self.stamp(); self.stamp_store(44)
        a("s_endpgm")

    def main_kernel(self):
        a = self.a
        a(".text"); a(f".globl {NAME}_kernel"); a(".p2align 8"); a(f".type {NAME}_kernel,@function"); a(f"{NAME}_kernel:")
        a("s_cmp_ge_u32 s2, 256"); a("s_cbranch_scc1 L_exit")
        self.nst = 0; self.stamp()
        a("s_load_dwordx16 s[16:31], s[0:1], 0"); a("s_load_dwordx8 s[32:39], s[0:1], 64")
        a("v_lshrrev_b32 v2, 6, v0"); a("v_and_b32 v1, 63, v0"); a("v_readfirstlane_b32 s3, v2")
        if self.safe: a("s_mov_b32 s15, 100000")
        a("s_waitcnt lgkmcnt(0)")
        self.stamp()
        a("s_cmp_ge_u32 s3, 4"); a("s_cbranch_scc1 L_att")
        self.helper()
        a("L_att:")
        self.attention()
        a("L_exit:"); a("s_endpgm")

    def fin_kernel(self):
        a = self.a
        WO = 0; SUM = 18432; MX = SUM + 512; DUMP = SUM + 1024
        a(".text"); a(".globl fin_kernel"); a(".p2align 8"); a(".type fin_kernel,@function"); a("fin_kernel:")
        a("s_cmp_ge_u32 s2, 16"); a("s_cbranch_scc1 F_exit")
        a("s_load_dwordx2 s[16:17], s[0:1], 0"); a("s_load_dwordx2 s[30:31], s[0:1], 56"); a("s_load_dwordx2 s[34:35], s[0:1], 72"); a("s_load_dwordx2 s[38:39], s[0:1], 88")
        a("v_lshrrev_b32 v2, 6, v0"); a("v_and_b32 v1, 63, v0"); a("v_readfirstlane_b32 s3, v2")
        vDma, vT, vT2, vT3, vT4, vA0, vA1, vA2, vQ = 2, 3, 4, 5, 6, 7, 8, 9, 10
        ACC = 12; LD = 24; WOP = 56; BO = 68; vM0, vM1 = 100, 101
        a(f"v_lshlrev_b32 v{vDma}, 4, v1")
        a(f"v_lshlrev_b32 v{vT}, 2, v0"); a(f"v_mov_b32 v{vT2}, 0"); a(f"v_mov_b32 v{vT3}, 0xff800000")
        a(f"v_cmp_gt_u32 vcc, 128, v0"); a(f"v_cndmask_b32 v{vT2}, v{vT3}, v{vT2}, vcc")
        a(f"v_cmp_gt_u32 vcc, 256, v0"); a("s_and_saveexec_b64 s[8:9], vcc"); a(f"ds_write_b32 v{vT}, v{vT2} offset:{SUM}"); a("s_mov_b64 exec, -1")
        a("s_waitcnt lgkmcnt(0)")
        self.srd(40, 38, 1 << 20); self.srd(44, 30, 18432); self.srd(48, 16, 3072); self.srd(52, 34, 3072)
        a("s_lshl_b32 s4, s2, 16"); a("s_lshl_b32 s5, s3, 13"); a("s_add_u32 s4, s4, s5"); a("s_add_u32 s5, s4, 4096")
        for i in range(8): a(f"buffer_load_dwordx4 {vr(LD+4*i,4)}, v{vDma}, s[40:43], s{4 + i//4} offen offset:{1024*(i%4)}")
        for k in range(3):
            if k == 2: a("s_cmp_ge_u32 s3, 2"); a("s_cbranch_scc1 F_skip")
            a(f"s_lshl_b32 s6, s3, 10"); a(f"s_add_u32 s6, s6, {8192*k}"); a("s_mov_b32 m0, s6"); a("s_nop 0")
            a(f"buffer_load_dwordx4 v{vDma}, s[44:47], s6 offen lds")
        a("F_skip:")
        a(f"v_lshrrev_b32 v{vT4}, 4, v1"); a(f"v_lshlrev_b32 v{vT}, 3, v{vT4}"); a("s_mul_i32 s7, s2, 192"); a("s_lshl_b32 s6, s3, 5"); a("s_add_u32 s7, s7, s6")
        a(f"buffer_load_dwordx2 {vr(vQ,2)}, v{vT}, s[48:51], s7 offen")
        a("s_mov_b32 s10, 0x00003f80"); a("s_mov_b32 s11, 0x3f800000")
        for i in range(12): a(f"v_mov_b32 v{ACC+i}, 0")
        a(f"v_bfe_u32 v{vT}, v1, 3, 1"); a(f"v_mul_u32_u24 v{vT}, 48, v{vT}"); a(f"v_bfe_u32 v{vT2}, v1, 1, 2"); a(f"v_lshl_add_u32 v{vT}, v{vT2}, 2, v{vT}")
        a(f"v_bfe_u32 v{vT3}, v1, 4, 1"); a(f"v_lshlrev_b32 v{vT3}, 1, v{vT3}"); a(f"v_bfe_u32 v{vA2}, v1, 5, 1"); a(f"v_or_b32 v{vT3}, v{vT3}, v{vA2}")
        a(f"v_add_u32 v{vT}, v{vT}, v{vT3}")
        a(f"v_and_b32 v{vA2}, 1, v1"); a(f"v_lshl_add_u32 v{vA0}, v{vA2}, 5, v{vT}"); a(f"v_lshlrev_b32 v{vA0}, 2, v{vA0}"); a(f"v_add_u32 v{vA0}, {SUM}, v{vA0}")
        a(f"v_lshlrev_b32 v{vA1}, 2, v{vT}"); a(f"v_add_u32 v{vA1}, {SUM+64}, v{vA1}")
        a(f"v_lshlrev_b32 v{vT}, 2, v1"); a(f"v_add_u32 v{vT}, {DUMP}, v{vT}")
        a(f"v_cmp_eq_u32 vcc, 1, v{vA2}"); a(f"v_cndmask_b32 v{vA1}, v{vA1}, v{vT}, vcc")
        a(f"v_bfe_u32 v{vA2}, v1, 3, 1"); a(f"v_lshl_add_u32 v{vA2}, v{vA2}, 1, v{vT3}"); a(f"v_lshlrev_b32 v{vA2}, 2, v{vA2}"); a(f"v_add_u32 v{vA2}, {SUM+384}, v{vA2}")
        a(f"v_and_b32 v{vT2}, 7, v1"); a(f"v_cmp_eq_u32 vcc, 1, v{vT2}"); a(f"v_cmp_gt_u32 s[8:9], 2, v{vT3}"); a("s_and_b64 vcc, vcc, s[8:9]")
        a(f"v_cndmask_b32 v{vA2}, v{vT}, v{vA2}, vcc")
        a("s_waitcnt vmcnt(0)")
        a("s_barrier")
        a(f"v_cmp_eq_u32 vcc, 5, v{vT2}"); a(f"v_cmp_ne_u32 s[8:9], 0, v{LD+2}"); a("s_and_b64 s[56:57], vcc, s[8:9]")
        a(f"v_and_b32 v{vT}, 15, v1"); a(f"v_lshrrev_b32 v{vT3}, 2, v{vT}"); a(f"v_lshl_add_u32 v{vT3}, v{vT4}, 3, v{vT3}"); a(f"v_mul_u32_u24 v{vT3}, 192, v{vT3}")
        a(f"v_and_b32 v{vT}, 3, v1"); a(f"v_lshl_add_u32 v{vT3}, v{vT}, 3, v{vT3}"); a("s_min_u32 s6, s3, 5"); a("s_lshl_b32 s6, s6, 5"); a(f"v_add_u32 v{vT3}, s6, v{vT3}")
        for ks in range(3):
            for e in range(2): a(f"ds_read_b64_tr_b16 {vr(WOP+4*ks+2*e,2)}, v{vT3} offset:{(32*ks+4*e)*192}")
        a("s_cmp_lg_u64 s[56:57], 0"); a("s_cbranch_scc1 F_slow")
        def accum(i):
            for d in range(4):
                a(f"v_dot2_f32_bf16 v{ACC+2*d}, v{LD+4*i+d}, s10, v{ACC+2*d}"); a(f"v_dot2_f32_bf16 v{ACC+2*d+1}, v{LD+4*i+d}, s11, v{ACC+2*d+1}")
            a(f"v_add_f32 v{ACC+8}, v{LD+4*i+2}, v{ACC+8}"); a(f"v_add_f32 v{ACC+9}, v{LD+4*i+3}, v{ACC+9}")
        for i in range(8): accum(i)
        a("s_branch F_red")
        a("F_slow:")
        a(f"v_and_b32 v{vT}, 56, v1"); a(f"v_or_b32 v{vT}, 3, v{vT}"); a(f"v_lshlrev_b32 v{vT}, 2, v{vT}")
        MB = 104
        for i in range(8):
            a(f"ds_bpermute_b32 v{MB+2*i}, v{vT}, v{LD+4*i+2}"); a(f"ds_bpermute_b32 v{MB+2*i+1}, v{vT}, v{LD+4*i+3}")
        a(f"v_bfe_u32 v{vT3}, v1, 3, 1"); a(f"v_lshlrev_b32 v{vT3}, 3, v{vT3}")
        a("s_waitcnt lgkmcnt(0)")
        a(f"v_mov_b32 v{vM0}, v{MB}"); a(f"v_mov_b32 v{vM1}, v{MB+1}")
        for i in range(1, 8): a(f"v_max_f32 v{vM0}, v{vM0}, v{MB+2*i}"); a(f"v_max_f32 v{vM1}, v{vM1}, v{MB+2*i+1}")
        a(f"ds_max_f32 v{vT3}, v{vM0} offset:{MX}"); a(f"ds_max_f32 v{vT3}, v{vM1} offset:{MX+4}")
        a("s_waitcnt lgkmcnt(0)"); a("s_barrier")
        a(f"ds_read_b64 {vr(vM0,2)}, v{vT3} offset:{MX}"); a("s_waitcnt lgkmcnt(0)")
        a(f"v_and_b32 v{vT}, 1, v1"); a(f"v_cmp_eq_u32 s[12:13], 1, v{vT}"); a(f"v_bfe_u32 v{vT}, v1, 2, 1"); a(f"v_cmp_eq_u32 s[14:15], 1, v{vT}")
        for i in range(8):
            m0, m1 = MB + 2 * i, MB + 2 * i + 1
            a(f"v_sub_f32 v{m0}, v{m0}, v{vM0}"); a(f"v_sub_f32 v{m1}, v{m1}, v{vM1}"); a(f"v_exp_f32 v{m0}, v{m0}"); a(f"v_exp_f32 v{m1}, v{m1}")
            a(f"v_cndmask_b32 v{vT}, v{m0}, v{m1}, s[12:13]"); a(f"v_cndmask_b32 v{vT3}, v{m0}, v{m1}, s[14:15]")
            for d in range(4):
                sc = vT if d < 2 else vT3
                a(f"v_lshlrev_b32 v{BO}, 16, v{LD+4*i+d}"); a(f"v_and_b32 v{BO+1}, 0xffff0000, v{LD+4*i+d}")
                a(f"v_fmac_f32 v{ACC+2*d}, v{BO}, v{sc}"); a(f"v_fmac_f32 v{ACC+2*d+1}, v{BO+1}, v{sc}")
            a(f"v_fmac_f32 v{ACC+8}, v{LD+4*i+2}, v{m0}"); a(f"v_fmac_f32 v{ACC+9}, v{LD+4*i+3}, v{m1}")
        a("F_red:")
        for k in range(3):
            x = ACC + 4 * k
            a(f"v_permlane32_swap_b32 v{x}, v{x+1}"); a(f"v_permlane32_swap_b32 v{x+2}, v{x+3}")
            a(f"v_add_f32 v{x}, v{x}, v{x+1}"); a(f"v_add_f32 v{x+2}, v{x+2}, v{x+3}")
        for k in range(3):
            x = ACC + 4 * k
            a(f"v_permlane16_swap_b32 v{x}, v{x+2}"); a(f"v_add_f32 v{x}, v{x}, v{x+2}")
            a(f"ds_add_f32 v{(vA0,vA1,vA2)[k]}, v{x}")
        a("s_waitcnt lgkmcnt(0)"); a("s_barrier")
        a("s_cmp_ge_u32 s3, 6"); a("s_cbranch_scc1 F_exit")
        a(f"v_lshlrev_b32 v{vT}, 5, v{vT4}")
        for ks in range(3):
            a(f"ds_read_b128 {vr(LD+8*ks,4)}, v{vT} offset:{SUM+128*ks}"); a(f"ds_read_b128 {vr(LD+8*ks+4,4)}, v{vT} offset:{SUM+128*ks+16}")
        a(f"v_mov_b32 v{vT2}, 0"); a(f"ds_read_b128 {vr(ACC,4)}, v{vT2} offset:{SUM+384}")
        a(f"v_cmp_le_u32 s[12:13], 3, v{vT4}"); a(f"v_cmp_le_u32 s[14:15], 2, v{vT4}"); a(f"v_cmp_le_u32 s[8:9], 1, v{vT4}")
        a("s_waitcnt lgkmcnt(0)")
        for h in range(4): a(f"v_rcp_f32 v{ACC+h}, v{ACC+h}")
        a(f"v_cndmask_b32 v{ACC+4}, v{ACC}, v{ACC+1}, s[12:13]"); a(f"v_cndmask_b32 v{ACC+5}, v{ACC+1}, v{ACC+2}, s[14:15]"); a(f"v_cndmask_b32 v{ACC+6}, v{ACC+2}, v{ACC+3}, s[8:9]")
        for ks in range(3):
            for i in range(8): a(f"v_mul_f32 v{LD+8*ks+i}, v{ACC+4+ks}, v{LD+8*ks+i}")
            for i in range(4): a(f"v_cvt_pk_bf16_f32 v{BO+4*ks+i}, v{LD+8*ks+2*i}, v{LD+8*ks+2*i+1}")
        for ks in range(3): a(f"v_mfma_f32_16x16x32_bf16 {vr(ACC+8,4)}, {vr(WOP+4*ks,4)}, {vr(BO+4*ks,4)}, {vr(ACC+8,4) if ks else 0}")
        a(f"v_lshlrev_b32 v{ACC}, 16, v{vQ}"); a(f"v_and_b32 v{ACC+1}, 0xffff0000, v{vQ}"); a(f"v_lshlrev_b32 v{ACC+2}, 16, v{vQ+1}"); a(f"v_and_b32 v{ACC+3}, 0xffff0000, v{vQ+1}")
        a(f"v_lshlrev_b32 v{vT}, 3, v{vT4}"); a(f"v_and_b32 v{vT2}, 15, v1"); a(f"v_cmp_eq_u32 vcc, 0, v{vT2}")
        a(f"v_cvt_pk_bf16_f32 v{ACC+4}, v{ACC+8}, v{ACC+9}"); a(f"v_cvt_pk_bf16_f32 v{ACC+5}, v{ACC+10}, v{ACC+11}")
        a(f"v_lshlrev_b32 v{ACC+8}, 16, v{ACC+4}"); a(f"v_and_b32 v{ACC+9}, 0xffff0000, v{ACC+4}"); a(f"v_lshlrev_b32 v{ACC+10}, 16, v{ACC+5}"); a(f"v_and_b32 v{ACC+11}, 0xffff0000, v{ACC+5}")
        for i in range(4): a(f"v_add_f32 v{ACC+i}, v{ACC+i}, v{ACC+8+i}")
        a(f"v_cvt_pk_bf16_f32 v{ACC+4}, v{ACC}, v{ACC+1}"); a(f"v_cvt_pk_bf16_f32 v{ACC+5}, v{ACC+2}, v{ACC+3}")
        a("s_and_saveexec_b64 s[8:9], vcc")
        a(f"buffer_store_dwordx2 {vr(ACC+4,2)}, v{vT}, s[52:55], s7 offen")
        a("F_exit:"); a("s_endpgm")

    def desc(self, name, nv, ns):
        return f"""
.amdhsa_kernel {name}
  .amdhsa_next_free_vgpr {nv}
  .amdhsa_next_free_sgpr {ns}
  .amdhsa_accum_offset {(nv+3)//4*4}
  .amdhsa_group_segment_fixed_size 0
  .amdhsa_kernarg_size 96
  .amdhsa_user_sgpr_count 2
  .amdhsa_user_sgpr_kernarg_segment_ptr 1
  .amdhsa_system_sgpr_workgroup_id_x 1
  .amdhsa_float_denorm_mode_32 3
.end_amdhsa_kernel
"""
    def build(self):
        self.main_kernel(); self.fin_kernel()
        hdr = open("cdna_kernels/%s.s.ref" % NAME).read().split("; Override")[0]
        hdr += f"; @launch kernel={NAME}_kernel grid=(256,1,1) block=(512,1,1) lds={LDS_MAIN}\n"
        hdr += f"; @launch kernel=fin_kernel grid=(16,1,1) block=(512,1,1) lds=20480\n"
        hdr += '.amdgcn_target "amdgcn-amd-amdhsa--gfx950"\n'
        body = self.a.render(verbose=True)
        tail = '.section .rodata,"a"\n.p2align 6' + self.desc(NAME + "_kernel", 256, 96) + ".p2align 6" + self.desc("fin_kernel", 128, 64)
        return hdr + body + tail

if __name__ == "__main__":
    open("k1.s", "w").write(Gen().build())
    open("k1_st.s", "w").write(Gen(stamps=True).build())
    open("k1_slow.s", "w").write(Gen(force_slow=True).build())
```

```python
import sys, struct, math
from asmlib import Asm
NAME = "standalone__detection_seg_mask2former__vision"
def f2u(x): return struct.unpack("<I", struct.pack("<f", x))[0]
def hx(x): return "0x%08x" % (x & 0xffffffff)

RS = 12288; SL = 3072
WQ = 110592; WM = 129024; WK23 = 147456; FLAGS = 156672; QS = 156928; LDS_MAIN = 160000
WK01 = 5 * RS; WLAT = 7 * RS; LO2 = WLAT + 18432
F_P = 0; F_WL = 16; F_WA = 20; F_DONE = 24; F_CMB = 32; F_MX = 48
LOG2E = 1.4426950408889634
BOUND = 64.0
STAMP_OFF = 0x1000000

class Ctr:
    def __init__(self, a, name, mx): self.a = a; self.name = name; self.mx = mx; self.q = []
    def issue(self, tag): self.q.append(tag)
    def n_after(self, tag):
        idx = max(i for i, t in enumerate(self.q) if t == tag)
        return len(self.q) - 1 - idx, idx
    def wait(self, tag):
        if tag not in self.q: return
        n, idx = self.n_after(tag)
        n2 = min(n, self.mx)
        self.a(f"s_waitcnt {self.name}({n2})")
        self.q = self.q[len(self.q) - n2:] if n2 else []
    def wait_all(self):
        self.a(f"s_waitcnt {self.name}(0)"); self.q = []

def vr(b, n=1): return f"v{b}" if n == 1 else f"v[{b}:{b+n-1}]"
def sr(b, n=1): return f"s{b}" if n == 1 else f"s[{b}:{b+n-1}]"

class Gen:
    def __init__(self, stamps=False, depth=4, force_slow=False, safe=True, nts='nt', ntw=''):
        self.a = Asm(); self.stamps = stamps; self.depth = depth; self.nl = 0; self.force_slow = force_slow
        self.nst = 0; self.safe = safe; self.nts = nts; self.ntw = ntw
    def lab(self, s="L"):
        self.nl += 1; return f"{s}_{self.nl}"
    def stamp(self):
        if self.stamps:
            assert self.nst < 15
            self.a(f"s_memrealtime s[{64+2*self.nst}:{65+2*self.nst}]"); self.nst += 1
    def stamp_store(self, vt):
        if not self.stamps: return
        a = self.a
        a("s_waitcnt lgkmcnt(0)")
        a("s_lshl_b32 s60, s2, 3"); a("s_add_u32 s60, s60, s3"); a("s_lshl_b32 s60, s60, 6"); a(f"s_add_u32 s60, s60, {STAMP_OFF}")
        a("s_add_u32 s62, s38, s60"); a("s_addc_u32 s63, s39, 0")
        a("s_mov_b64 exec, 1")
        for i in range(16):
            a(f"v_mov_b32 v{vt+i}, " + (f"s{64+2*i}" if i < self.nst else "0"))
        a(f"v_mov_b32 v{vt+16}, 0")
        for i in range(4): a(f"global_store_dwordx4 v{vt+16}, v[{vt+4*i}:{vt+4*i+3}], s[62:63] offset:{16*i}")
        a("s_mov_b64 exec, -1")
    def srd(self, d, p, nbytes):
        a = self.a
        a(f"s_mov_b32 s{d}, s{p}"); a(f"s_mov_b32 s{d+1}, s{p+1}"); a(f"s_mov_b32 s{d+2}, {nbytes}"); a(f"s_mov_b32 s{d+3}, 0x20000")
    def poll(self, vflag, off, target, vt, st, sleep=1):
        a = self.a; L = self.lab("Lpoll"); D = self.lab("Lpd")
        a(f"{L}:")
        a(f"ds_read_b32 v{vt}, v{vflag} offset:{off}")
        a("s_waitcnt lgkmcnt(0)")
        a(f"v_readfirstlane_b32 s{st}, v{vt}")
        a(f"s_cmp_ge_u32 s{st}, {target}")
        a(f"s_cbranch_scc1 {D}")
        if sleep: a(f"s_sleep {sleep}")
        if self.safe: a("s_sub_u32 s15, s15, 1"); a(f"s_cbranch_scc1 {D}")
        a(f"s_branch {L}")
        a(f"{D}:")
    def flag_add(self, vflag, off, vone):
        a = self.a
        a("s_mov_b64 exec, 1"); a(f"ds_add_u32 v{vflag}, v{vone} offset:{off}"); a("s_mov_b64 exec, -1")

    def helper(self):
        a = self.a; vm = Ctr(a, "vmcnt", 63); lg = Ctr(a, "lgkmcnt", 15)
        self.nst = 2
        D = self.depth; NB = D + 1
        vDma, vHi, vGWE, vGWO, vGR0, vGR1, vKW0, vKW1, vFlag, vLoR, vWL, vOne, vT, vT2, vT3, vT4 = range(2, 18)
        vS1, vS2, vRs = 18, 20, 22
        X = 24; G = 48; G4 = 72; FB = 96
        BOP = 168; WOP = 204; DD = 228
        assert FB + NB * 12 <= BOP
        sHI, sLO, sW = 40, 44, 48
        sOff = 52
        sT, sT2, sLo, sLo2, sM = 57, 58, 59, 60, 61
        sOneLo, sOneHi = 4, 5
        self.srd(sHI, 18, 28311552); self.srd(sLO, 20, 7077888); self.srd(sW, 22, 18432)
        a(f"v_lshlrev_b32 v{vDma}, 4, v1")
        a(f"s_lshl_b32 s{sT}, s3, 12"); a(f"s_add_u32 s{sM}, s{sT}, {WLAT}"); a(f"s_mov_b32 m0, s{sM}")
        a(f"s_mul_i32 s{sT2}, s2, 18"); a(f"s_lshl_b32 s{sLo}, s3, 2"); a(f"s_add_u32 s{sLo}, s{sLo}, s{sT2}")
        for m in range(4):
            a(f"buffer_load_dwordx4 v{vDma}, {sr(sW,4)}, s{sT} offen offset:{1024*m} {self.ntw} lds"); vm.issue("wl")
        Ls = self.lab()
        a("s_cmp_ge_u32 s3, 2"); a(f"s_cbranch_scc1 {Ls}")
        a(f"s_lshl_b32 s{sT}, s3, 10"); a(f"s_add_u32 s{sT}, s{sT}, 16384"); a(f"s_add_u32 s{sM}, s{sT}, {WLAT}"); a(f"s_mov_b32 m0, s{sM}")
        a("s_nop 0")
        a(f"buffer_load_dwordx4 v{vDma}, {sr(sW,4)}, s{sT} offen {self.ntw} lds")
        a(f"{Ls}:")
        a(f"s_and_b32 s{sLo2}, s3, 1"); a(f"s_add_u32 s{sLo2}, s{sLo2}, s{sT2}"); a(f"s_add_u32 s{sLo2}, s{sLo2}, 16")
        a(f"s_mul_i32 s6, s3, {SL}")
        a(f"s_mul_i32 s{sT}, s{sLo}, 1536")
        for s in range(2):
            a(f"s_add_u32 s{sM}, s6, {(1+2*s)*RS}"); a(f"s_mov_b32 m0, s{sM}")
            if s: a(f"s_add_u32 s{sT}, s{sT}, 3072")
            else: a("s_nop 0")
            for m in range(3):
                a(f"buffer_load_dwordx4 v{vDma}, {sr(sLO,4)}, s{sT} offen offset:{1024*m} {self.nts} lds"); vm.issue("lo")
        a(f"s_mul_i32 s{sM}, s3, 1536"); a(f"s_add_u32 s{sM}, s{sM}, {LO2}"); a(f"s_mov_b32 m0, s{sM}")
        a(f"s_mul_i32 s{sT}, s{sLo2}, 1536")
        a(f"buffer_load_dwordx4 v{vDma}, {sr(sLO,4)}, s{sT} offen {self.nts} lds"); vm.issue("lo")
        a("s_mov_b32 exec_hi, 0")
        a(f"buffer_load_dwordx4 v{vDma}, {sr(sLO,4)}, s{sT} offen offset:1024 {self.nts} lds"); vm.issue("lo")
        a("s_mov_b32 exec_hi, -1")
        a(f"v_lshrrev_b32 v{vT}, 2, v1"); a(f"v_and_b32 v{vT2}, 3, v1")
        a(f"v_mul_u32_u24 v{vHi}, 192, v{vT}"); a(f"v_lshl_add_u32 v{vHi}, v{vT2}, 4, v{vHi}")
        for i in range(5):
            src = sLo if i < 4 else sLo2
            if 0 < i < 4: a(f"s_add_u32 s{sLo}, s{sLo}, 1")
            a(f"s_mul_hi_u32 s{sT}, s{src}, 0x0aaaaaab"); a(f"s_mul_i32 s{sT2}, s{sT}, 24"); a(f"s_sub_u32 s{sT2}, s{src}, s{sT2}")
            a(f"s_mul_i32 s{sT}, s{sT}, 147456"); a(f"s_mul_i32 s{sT2}, s{sT2}, 3072"); a(f"s_add_u32 s{sOff+i}, s{sT}, s{sT2}")
            if i == 0:
                self.h_issue(0, vm, vHi, sHI, sOff, FB, NB)
        a(f"s_lshr_b32 s{sT}, s3, 1"); a(f"s_mul_i32 s{sT}, s{sT}, 73728"); a(f"s_add_u32 s{sOff+4}, s{sOff+4}, s{sT}")
        a(f"v_mov_b32 v{vFlag}, {FLAGS}"); a(f"v_mov_b32 v{vOne}, 1")
        Ls = self.lab()
        a("s_cmp_lg_u32 s3, 0"); a(f"s_cbranch_scc1 {Ls}")
        a(f"v_lshl_add_u32 v{vT3}, v1, 2, v{vFlag}"); a(f"v_mov_b32 v{vT4}, 0"); a(f"ds_write_b32 v{vT3}, v{vT4}"); a("s_waitcnt lgkmcnt(0)")
        a(f"{Ls}:")
        a("s_barrier")
        a(f"v_lshrrev_b32 v{vT3}, 1, v{vT2}"); a(f"v_lshlrev_b32 v{vT3}, 1, v{vT3}"); a(f"v_lshl_add_u32 v{vT3}, v{vT2}, 2, v{vT3}")
        a(f"v_xor_b32 v{vT3}, v{vT3}, v{vT}"); a(f"v_lshl_add_u32 v{vT3}, v{vT2}, 4, v{vT3}"); a(f"v_lshlrev_b32 v{vT3}, 4, v{vT3}")
        a(f"v_add_u32 v{vKW0}, s6, v{vT3}"); a(f"v_add_u32 v{vKW1}, {5*RS}, v{vKW0}")
        a(f"v_lshrrev_b32 v{vT}, 1, v{vT}")
        self.swap01(vT, vT3, vT4)
        a(f"v_lshlrev_b32 v{vT2}, 1, v{vT2}"); a(f"v_xor_b32 v{vT3}, v{vT3}, v{vT2}")
        a(f"v_mul_u32_u24 v{vT}, 0x180, v{vT}"); a(f"v_add_u32 v{vT}, s6, v{vT}")
        a(f"v_lshl_add_u32 v{vGR0}, v{vT3}, 4, v{vT}"); a(f"v_xor_b32 v{vGR1}, 16, v{vGR0}")
        a(f"v_and_b32 v{vT}, 7, v1"); self.swap01(vT, vT3, vT4)
        a(f"v_lshrrev_b32 v{vT2}, 4, v1"); a(f"v_xor_b32 v{vT3}, v{vT3}, v{vT2}")
        a(f"v_mul_u32_u24 v{vT}, 0x180, v{vT}"); a(f"v_bfe_u32 v{vT4}, v1, 3, 1"); a(f"v_mul_u32_u24 v{vT4}, {2*RS}, v{vT4}")
        a(f"v_add3_u32 v{vT}, v{vT}, v{vT4}, s6"); a(f"v_lshl_add_u32 v{vGWE}, v{vT3}, 4, v{vT}"); a(f"v_xor_b32 v{vGWO}, 64, v{vGWE}")
        a(f"v_and_b32 v{vT}, 15, v1"); a(f"v_mul_u32_u24 v{vT3}, 192, v{vT}"); a(f"v_lshl_add_u32 v{vT3}, v{vT2}, 4, v{vT3}")
        a(f"v_add_u32 v{vLoR}, s6, v{vT3}")
        a(f"s_mul_i32 s{sT}, s3, 1536"); a(f"s_add_u32 s{sT}, s{sT}, {LO2}"); a(f"v_add_u32 v{vT4}, s{sT}, v{vT3}")
        a(f"v_lshrrev_b32 v{vT3}, 2, v{vT}"); a(f"v_lshl_add_u32 v{vT3}, v{vT2}, 3, v{vT3}"); a(f"v_mul_u32_u24 v{vT3}, 192, v{vT3}")
        a(f"v_and_b32 v{vT}, 3, v1"); a(f"v_lshl_add_u32 v{vT3}, v{vT}, 3, v{vT3}"); a(f"v_add_u32 v{vWL}, {WLAT}, v{vT3}")
        a(f"s_mov_b32 s{sOneLo}, 0x00003f80"); a(f"s_mov_b32 s{sOneHi}, 0x3f800000")
        vm.wait("wl")
        self.flag_add(vFlag, F_WL, vOne)
        vm.wait("lo")
        self.stamp()
        nissued = 1
        if D >= 2: self.h_issue(1, vm, vHi, sHI, sOff, FB, NB); nissued = 2
        for s in range(3):
            for ks in range(3):
                r = BOP + (s * 3 + ks) * 4
                if s < 2: a(f"ds_read_b128 {vr(r,4)}, v{vLoR} offset:{(1+2*s)*RS + ks*64}")
                else: a(f"ds_read_b128 {vr(r,4)}, v{vT4} offset:{ks*64}")
        self.poll(vFlag, F_WL, 4, vT, sT)
        def wread(t):
            for ks in range(3):
                for e in range(2):
                    r = WOP + (t & 1) * 12 + ks * 4 + 2 * e
                    a(f"ds_read_b64_tr_b16 {vr(r,2)}, v{vWL} offset:{(32*ks + 4*e)*192 + t*32}"); lg.issue(f"w{t}")
        def gwrite(t):
            for s in range(3):
                base = (0, 4 * RS, RS)[s]
                a(f"ds_write_b128 v{vGWO if t&1 else vGWE}, {vr(DD + (t&1)*12 + s*4, 4)} offset:{base + (t>>1)*128}"); lg.issue(f"g{t}")
        wread(0); wread(1)
        for t in range(6):
            lg.wait(f"w{t}")
            for ks in range(3):
                for s in range(3):
                    d = vr(DD + (t & 1) * 12 + s * 4, 4)
                    a(f"v_mfma_f32_16x16x32_bf16 {d}, {vr(WOP + (t&1)*12 + ks*4, 4)}, {vr(BOP + (s*3+ks)*4, 4)}, {d if ks else 0}")
                if ks == 1 and t > 0: gwrite(t - 1)
            if t + 2 < 6: wread(t + 2)
            if t in (2,) and nissued < min(D, 9): self.h_issue(nissued, vm, vHi, sHI, sOff, FB, NB); nissued += 1
        gwrite(5)
        self.flag_add(vFlag, F_DONE, vOne); lg.issue("x")
        while nissued < min(D, 9): self.h_issue(nissued, vm, vHi, sHI, sOff, FB, NB); nissued += 1
        def gread(dst, off):
            for ks in range(3):
                for e in range(2):
                    a(f"ds_read_b128 {vr(dst + ks*8 + 4*e, 4)}, v{vGR1 if e else vGR0} offset:{off + ks*128}"); lg.issue("gr")
        gread(G, 0); gread(G4, RS)
        self.stamp()
        for r in range(9):
            g = G4 if r == 8 else G
            fb = FB + (r % NB) * 12
            lg.wait("gr")
            vm.wait(f"u{r}")
            if r in (0, 4, 8): self.stamp()
            for ks in range(3):
                for i in range(4):
                    a(f"v_dot2_f32_bf16 v{X+ks*8+2*i}, v{fb+ks*4+i}, s{sOneLo}, v{g+ks*8+2*i}")
                    a(f"v_dot2_f32_bf16 v{X+ks*8+2*i+1}, v{fb+ks*4+i}, s{sOneHi}, v{g+ks*8+2*i+1}")
            if nissued < 9: self.h_issue(nissued, vm, vHi, sHI, sOff, FB, NB); nissued += 1
            if r in (1, 3, 5):
                a(f"v_add_u32 v{vGR0}, {2*RS}, v{vGR0}"); a(f"v_add_u32 v{vGR1}, {2*RS}, v{vGR1}")
                gread(G, 0)
            a(f"v_pk_add_f32 {vr(vS1,2)}, {vr(X,2)}, {vr(X+2,2)}"); a(f"v_pk_mul_f32 {vr(vS2,2)}, {vr(X,2)}, {vr(X,2)}")
            a(f"v_pk_fma_f32 {vr(vS2,2)}, {vr(X+2,2)}, {vr(X+2,2)}, {vr(vS2,2)}")
            for k in range(2, 12):
                a(f"v_pk_add_f32 {vr(vS1,2)}, {vr(vS1,2)}, {vr(X+2*k,2)}")
                a(f"v_pk_fma_f32 {vr(vS2,2)}, {vr(X+2*k,2)}, {vr(X+2*k,2)}, {vr(vS2,2)}")
            a(f"v_add_f32 v{vS1}, v{vS1}, v{vS1+1}"); a(f"v_add_f32 v{vS2}, v{vS2}, v{vS2+1}")
            for qp in ("[1,0,3,2]", "[2,3,0,1]"):
                a(f"v_add_f32_dpp v{vS1}, v{vS1}, v{vS1} quad_perm:{qp} row_mask:0xf bank_mask:0xf")
                a(f"v_add_f32_dpp v{vS2}, v{vS2}, v{vS2} quad_perm:{qp} row_mask:0xf bank_mask:0xf")
            a(f"v_mul_f32 v{vS1}, {hx(f2u(1/96))}, v{vS1}")
            a(f"v_mul_f32 v{vS1+1}, v{vS1}, v{vS1}")
            a(f"v_mul_f32 v{vS2}, {hx(f2u(1/96))}, v{vS2}")
            a(f"v_sub_f32 v{vS2}, v{vS2}, v{vS1+1}")
            a(f"v_max_f32 v{vS2}, 0, v{vS2}")
            a(f"v_add_f32 v{vS2}, {hx(f2u(1e-5))}, v{vS2}")
            a(f"v_rsq_f32 v{vRs}, v{vS2}")
            a(f"v_mul_f32_e64 v{vRs+1}, -v{vS1}, v{vRs}")
            if r == 5: self.poll(vFlag, F_DONE, 8, vT, sT); lg.q = []
            kw = vKW0 if r < 5 else vKW1; ko = (r if r < 5 else r - 5) * RS
            for ks in range(3):
                for k in range(4):
                    x = X + ks * 8 + 2 * k
                    a(f"v_pk_fma_f32 {vr(x,2)}, {vr(x,2)}, {vr(vRs,2)}, {vr(vRs,2)} op_sel:[0,0,1] op_sel_hi:[1,0,1]")
                for k in range(4):
                    x = X + ks * 8 + 2 * k
                    a(f"v_cvt_pk_bf16_f32 v{X+ks*8+k}, v{x}, v{x+1}")
                a(f"ds_write_b128 v{kw}, {vr(X+ks*8,4)} offset:{ko + ks*1024}"); lg.issue("kw")
            a(f"v_mov_b32 v{vT}, {r+1}")
            a(f"v_lshl_add_u32 v{vT2}, s3, 2, v{vFlag}") if r == 0 else None
            a("s_mov_b64 exec, 1"); a(f"ds_write_b32 v{vT2}, v{vT} offset:{F_P}"); a("s_mov_b64 exec, -1"); lg.issue("fl")
        self.stamp()
        self.stamp_store(24)
        a("s_endpgm")
    def h_issue(self, u, vm, vHi, sHI, sOff, FB, NB):
        a = self.a
        i = u // 2 if u < 8 else 4
        if u < 8 and (u & 1): a(f"s_add_u32 s{sOff+i}, s{sOff+i}, 73728")
        for ks in range(3):
            r = FB + (u % NB) * 12 + ks * 4
            a(f"buffer_load_dwordx4 {vr(r,4)}, v{vHi}, {sr(sHI,4)}, s{sOff+i} offen offset:{ks*64} {self.nts}"); vm.issue(f"u{u}")
    def swap01(self, src, dst, tmp):
        a = self.a
        a(f"v_and_b32 v{dst}, 4, v{src}"); a(f"v_bfe_u32 v{tmp}, v{src}, 1, 1"); a(f"v_or_b32 v{dst}, v{dst}, v{tmp}")
        a(f"v_and_b32 v{tmp}, 1, v{src}"); a(f"v_lshl_or_b32 v{dst}, v{tmp}, 1, v{dst}")

    def attention(self):
        a = self.a; vm = Ctr(a, "vmcnt", 63); lg = Ctr(a, "lgkmcnt", 15)
        self.nst = 2
        vDma, vFlag, vOne, vT, vT2, vT3, vT4, vT5, vSA0, vSA1, vUA0, vUA1, vL, vM, vPF, vOnes = range(2, 18)
        AB = 20; U = 44; S = 92; P = 108; SA = 116; UA = 140; WV = 164
        vA0, vA1, vA2, vA3 = 236, 237, 238, 239
        sW = 40; sA, sHP, sKH, sT, sM, sKn, sSlow = 44, 45, 46, 47, 48, 49, 50
        a(f"s_sub_u32 s{sA}, s3, 4"); a(f"s_lshr_b32 s{sHP}, s{sA}, 1"); a(f"s_and_b32 s{sKH}, s{sA}, 1")
        a(f"v_lshlrev_b32 v{vDma}, 4, v1")
        def dma_mat(p, base):
            self.srd(sW, p, 18432)
            a(f"s_lshl_b32 s{sT}, s{sA}, 12"); a(f"s_add_u32 s{sM}, s{sT}, {base}"); a(f"s_mov_b32 m0, s{sM}"); a("s_nop 0")
            for m in range(4): a(f"buffer_load_dwordx4 v{vDma}, {sr(sW,4)}, s{sT} offen offset:{1024*m} {self.ntw} lds")
            Ls = self.lab()
            a(f"s_cmp_ge_u32 s{sA}, 2"); a(f"s_cbranch_scc1 {Ls}")
            a(f"s_lshl_b32 s{sT}, s{sA}, 10"); a(f"s_add_u32 s{sT}, s{sT}, 16384"); a(f"s_add_u32 s{sM}, s{sT}, {base}"); a(f"s_mov_b32 m0, s{sM}"); a("s_nop 0")
            a(f"buffer_load_dwordx4 v{vDma}, {sr(sW,4)}, s{sT} offen {self.ntw} lds")
            a(f"{Ls}:")
        a("s_barrier")
        Ls = self.lab()
        self.srd(sW, 16, 3072)
        a(f"s_cmp_eq_u32 s{sA}, 0"); a(f"s_cbranch_scc1 {Ls}")
        a(f"s_lshl_b32 s{sT}, s{sA}, 10"); a(f"s_sub_u32 s{sT}, s{sT}, 1024"); a(f"s_add_u32 s{sM}, s{sT}, {QS}"); a(f"s_mov_b32 m0, s{sM}"); a("s_nop 0")
        a(f"buffer_load_dwordx4 v{vDma}, {sr(sW,4)}, s{sT} offen {self.ntw} lds")
        a(f"{Ls}:")
        dma_mat(24, WQ); dma_mat(32, WM)
        self.srd(sW, 26, 18432)
        a(f"s_mul_i32 s{sT}, s{sKH}, 5120"); a(f"s_mul_i32 s51, s{sHP}, {WK23-WK01}"); a(f"s_add_u32 s51, s51, {WK01}")
        a(f"s_add_u32 s{sM}, s51, s{sT}"); a(f"s_mov_b32 m0, s{sM}"); a(f"s_mul_i32 s52, s{sHP}, 9216"); a(f"s_add_u32 s{sT}, s{sT}, s52")
        for m in range(4): a(f"buffer_load_dwordx4 v{vDma}, {sr(sW,4)}, s{sT} offen offset:{1024*m} {self.ntw} lds")
        Ls = self.lab()
        a(f"s_cmp_lg_u32 s{sKH}, 0"); a(f"s_cbranch_scc1 {Ls}")
        a(f"s_add_u32 s{sM}, s{sM}, 4096"); a(f"s_mov_b32 m0, s{sM}"); a(f"s_add_u32 s{sT}, s{sT}, 4096")
        a(f"buffer_load_dwordx4 v{vDma}, {sr(sW,4)}, s{sT} offen {self.ntw} lds")
        a(f"{Ls}:")
        a(f"v_mov_b32 v{vFlag}, {FLAGS}"); a(f"v_mov_b32 v{vOne}, 1"); a(f"v_mov_b32 v{vOnes}, 0x3f803f80"); a(f"v_mov_b32 v{vL}, 0"); a(f"v_mov_b32 v{vM}, 0")
        a(f"s_lshl_b32 s{sT}, s{sKH}, 3"); a(f"v_add_u32 v{vPF}, s{sT}, v{vFlag}")
        a(f"s_mul_i32 s53, s{sKH}, 6144")
        a(f"v_and_b32 v{vT}, 15, v1"); a(f"v_lshrrev_b32 v{vT2}, 5, v1"); a(f"v_bfe_u32 v{vT3}, v1, 4, 1")
        a(f"v_mul_u32_u24 v{vT4}, {SL}, v{vT3}"); a(f"v_add_u32 v{vT4}, s53, v{vT4}")
        a(f"v_lshlrev_b32 v{vT5}, 2, v{vT2}"); a(f"v_xor_b32 v{vT5}, v{vT5}, v{vT}")
        a(f"v_lshl_add_u32 v{vSA0}, v{vT2}, 4, v{vT5}"); a(f"v_lshl_add_u32 v{vSA0}, v{vSA0}, 4, v{vT4}")
        a(f"v_xor_b32 v{vT5}, 10, v{vT5}")
        a(f"v_lshl_add_u32 v{vSA1}, v{vT2}, 4, v{vT5}"); a(f"v_add_u32 v{vSA1}, 32, v{vSA1}"); a(f"v_lshl_add_u32 v{vSA1}, v{vSA1}, 4, v{vT4}")
        a(f"v_bfe_u32 v{vT4}, v1, 1, 1"); a(f"v_lshl_add_u32 v{vT4}, v{vT3}, 1, v{vT4}")
        a(f"v_bfe_u32 v{vT5}, v1, 2, 2"); a(f"v_lshl_add_u32 v{vT5}, v{vT2}, 2, v{vT5}")
        a(f"v_lshlrev_b32 v{vA0}, 1, v{vT3}"); a(f"v_lshl_add_u32 v{vA0}, v{vT4}, 2, v{vA0}")
        a(f"v_xor_b32 v{vT5}, v{vT5}, v{vA0}"); a(f"v_lshl_add_u32 v{vT5}, v{vT4}, 4, v{vT5}"); a(f"v_lshlrev_b32 v{vT5}, 4, v{vT5}")
        a(f"v_and_b32 v{vA0}, 1, v1"); a(f"v_lshl_add_u32 v{vT5}, v{vA0}, 3, v{vT5}"); a(f"v_add_u32 v{vUA0}, s53, v{vT5}"); a(f"v_xor_b32 v{vUA1}, 128, v{vUA0}")
        a(f"v_mul_u32_u24 v{vA0}, 192, v{vT}"); a(f"v_lshl_add_u32 v{vA0}, v{vT2}, 4, v{vA0}"); a(f"v_add_u32 v{vA0}, {QS}, v{vA0}")
        a(f"v_and_b32 v{vT4}, 1, v1"); a(f"v_lshlrev_b32 v{vT4}, 3, v{vT4}"); a(f"v_bfe_u32 v{vT5}, v1, 1, 1"); a(f"v_lshl_add_u32 v{vT4}, v{vT5}, 2, v{vT4}")
        a(f"v_lshl_add_u32 v{vT4}, v{vT3}, 4, v{vT4}")
        a(f"v_bfe_u32 v{vT5}, v1, 2, 2"); a(f"v_lshl_add_u32 v{vT5}, v{vT2}, 3, v{vT5}")
        a(f"v_mul_u32_u24 v{vA3}, 192, v{vT5}"); a(f"v_lshl_add_u32 v{vA3}, v{vT4}, 1, v{vA3}"); a(f"v_add_u32 v{vA3}, {WM}, v{vA3}")
        a(f"s_mul_i32 s{sT}, s{sHP}, 9216"); a(f"s_add_u32 s{sT}, s{sT}, {WQ}")
        a(f"v_mul_u32_u24 v{vT5}, 48, v{vT5}"); a(f"v_add_u32 v{vT5}, s{sT}, v{vT5}")
        a(f"v_lshl_add_u32 v{vA1}, v{vT4}, 1, v{vT5}"); a(f"v_add_u32 v{vA2}, 4560, v{vA1}")
        a(f"v_cmp_le_u32 vcc, 24, v{vT4}"); a(f"v_cndmask_b32 v{vA1}, v{vA1}, v{vA2}, vcc")
        a(f"v_and_b32 v{vT4}, 15, v{vT4}"); a(f"v_lshl_add_u32 v{vA2}, v{vT4}, 1, v{vT5}"); a(f"v_add_u32 v{vA2}, {4608+16}, v{vA2}")
        a(f"v_and_b32 v{vT4}, 19, v1"); a(f"v_bfe_u32 v{vT5}, v1, 2, 1"); a(f"v_lshl_or_b32 v{vT4}, v{vT5}, 3, v{vT4}")
        a(f"v_bfe_u32 v{vT5}, v1, 3, 1"); a(f"v_lshl_or_b32 v{vT4}, v{vT5}, 2, v{vT4}")
        a(f"v_mul_u32_u24 v{vT4}, 48, v{vT4}"); a(f"v_add_u32 v{vT4}, s51, v{vT4}")
        a(f"v_mul_u32_u24 v{vT5}, 4576, v{vT2}"); a(f"v_add3_u32 v{vT5}, v{vT5}, v{vT4}, 32")
        a(f"v_lshl_add_u32 v{vT4}, v{vT2}, 4, v{vT4}")
        sc0, sc1, sc2 = P, P + 1, P + 2
        a(f"v_cmp_eq_u32 vcc, 0, v{vT3}"); a(f"v_cndmask_b32 v{sc0}, 0, 2.0, vcc"); a(f"v_cndmask_b32 v{sc2}, 2.0, 0, vcc")
        a(f"v_cmp_eq_u32 vcc, v{vT2}, v{vT3}"); a(f"v_cndmask_b32 v{sc1}, 0, 2.0, vcc")
        a("s_waitcnt vmcnt(0)")
        self.stamp()
        self.flag_add(vFlag, F_WA, vOne)
        self.poll(vFlag, F_WA, 4, vT, sT)
        qB = SA; DQ = WV; DA = U; OP = WV + 32; QB = UA
        for ks in range(6): a(f"ds_read_b128 {vr(qB+4*ks,4)}, v{vA0} offset:{ks*32}"); lg.issue("q")
        jobs = []
        for TQ in range(2):
            for ks in range(6): jobs.append(("q", TQ, ks))
        for TA in range(3):
            for ks in range(6): jobs.append(("m", TA, ks))
        for TA in range(3):
            for s in range(3): jobs.append(("k", TA, s))
        NR = 8
        def rd(n):
            k, T, ks = jobs[n]; r = OP + (n % NR) * 4
            if k == "q":
                for e in range(2): a(f"ds_read_b64_tr_b16 {vr(r+2*e,2)}, v{vA2 if T else vA1} offset:{ks*768 + e*192}"); lg.issue(n)
            elif k == "m":
                for e in range(2): a(f"ds_read_b64_tr_b16 {vr(r+2*e,2)}, v{vA3} offset:{ks*3072 + e*768 + T*64}"); lg.issue(n)
            else:
                if ks == 1: a(f"ds_read_b128 {vr(r,4)}, v{vT5} offset:{T*1536}")
                else: a(f"ds_read_b128 {vr(r,4)}, v{vT4} offset:{T*1536 + (4624 if ks == 2 else 0)}")
                lg.issue(n)
        AH = 5
        for n in range(AH): rd(n)
        for n, (k, T, ks) in enumerate(jobs):
            if n + AH < len(jobs): rd(n + AH)
            lg.wait(n)
            r = vr(OP + (n % NR) * 4, 4)
            if k == "q": d = vr(DQ + 16 * T, 16); a(f"v_mfma_f32_32x32x16_bf16 {d}, {r}, {vr(qB+4*ks,4)}, {d if ks else 0}")
            elif k == "m": d = vr(DA + 16 * T, 16); a(f"v_mfma_f32_32x32x16_bf16 {d}, {r}, {vr(qB+4*ks,4)}, {d if ks else 0}")
            else: d = vr(DA + 16 * T, 16); a(f"v_mfma_f32_32x32x16_bf16 {d}, {r}, {vr(QB+4*ks,4)}, {d}")
            if 14 <= n < 26:
                jn = n - 14; s = jn // 4; p = jn % 4; x = DQ + 8 * s + 2 * p
                a(f"v_mul_f32 v{x}, v{P+s}, v{x}"); a(f"v_mul_f32 v{x+1}, v{P+s}, v{x+1}"); a(f"v_cvt_pk_bf16_f32 v{QB+4*s+p}, v{x}, v{x+1}")
        self.flag_add(vFlag, F_DONE, vOne); lg.q = []
        a(f"s_mov_b32 s54, {hx(f2u(96**-0.5 * LOG2E))}"); a("s_mov_b32 s55, s54")
        a(f"v_mov_b32 v{vT}, 0")
        for i in range(24):
            x = DA + 2 * i
            a(f"v_pk_mul_f32 {vr(x,2)}, {vr(x,2)}, s[54:55]"); a(f"v_cvt_pk_bf16_f32 v{AB+i}, v{x}, v{x+1}")
        for i in range(24): a(f"v_dot2_f32_bf16 v{vT}, v{AB+i}, v{AB+i}, v{vT}")
        a(f"v_mov_b32 v{vT2}, v{vT}"); a(f"v_permlane32_swap_b32 v{vT}, v{vT2}"); a(f"v_add_f32 v{vT}, v{vT}, v{vT2}")
        thr = (BOUND / 1.01) ** 2 / 96.0
        if self.force_slow: thr = -1.0
        a(f"v_cmp_nge_f32 vcc, {hx(f2u(thr))}, v{vT}")
        a(f"s_cmp_lg_u64 vcc, 0"); a(f"s_cselect_b32 s{sSlow}, 1, 0")
        for i in range(48): a(f"v_mov_b32 v{U+i}, 0")
        a(f"s_mov_b32 s{sKn}, 0")
        self.stamp()
        LSLOW = self.lab("Lslow"); LEPI = self.lab("Lepi")
        a(f"s_cmp_eq_u32 s{sSlow}, 1"); a(f"s_cbranch_scc1 {LSLOW}")
        def wait_tile(r):
            L = self.lab("Lw"); Dn = self.lab("Lwd")
            a(f"{L}:"); a(f"s_cmp_gt_u32 s{sKn}, {r}"); a(f"s_cbranch_scc1 {Dn}")
            a(f"ds_read_b64 {vr(vT4,2)}, v{vPF} offset:{F_P}"); a("s_waitcnt lgkmcnt(0)")
            a(f"v_min_u32 v{vT4}, v{vT4}, v{vT5}"); a(f"v_readfirstlane_b32 s{sKn}, v{vT4}")
            if self.safe: a("s_sub_u32 s15, s15, 1"); a(f"s_cbranch_scc1 {Dn}")
            a(f"s_branch {L}")
            a(f"{Dn}:")
        def s_stage(lg):
            for ks in range(6): a(f"ds_read_b128 {vr(SA+4*ks,4)}, v{vSA1 if ks&1 else vSA0} offset:{(ks>>1)*1024}"); lg.issue(f"s{ks}")
        def s_mfma(lg, with_tr):
            for ks in range(6):
                lg.wait(f"s{ks}")
                a(f"v_mfma_f32_32x32x16_bf16 {vr(S,16)}, {vr(SA+4*ks,4)}, {vr(AB+4*ks,4)}, {vr(S,16) if ks else 0}")
                if with_tr:
                    s, T = ks // 3, ks % 3
                    for e in range(2): a(f"ds_read_b64_tr_b16 {vr(UA+(s*3+T)*4+2*e,2)}, v{vUA1 if e else vUA0} offset:{s*3072 + T*1024}"); lg.issue(f"t{s}{T}")
        def adv(sgn=1):
            for v in (vSA0, vSA1, vUA0, vUA1): a(f"v_add_u32 v{v}, {RS if sgn > 0 else hx(-9*RS)}, v{v}")
        def wv_dma():
            self.poll(vFlag, F_DONE, 8, vT, sT)
            self.srd(sW, 28, 18432)
            a(f"s_mul_i32 s56, s{sA}, 9216"); a(f"s_add_u32 s56, s56, {WQ}"); a(f"s_mov_b32 s{sM}, s56")
            a(f"s_mul_i32 s{sT}, s{sHP}, 9216")
            for m in range(9):
                if m % 4 == 0:
                    if m: a(f"s_add_u32 s{sM}, s{sM}, 4096"); a(f"s_add_u32 s{sT}, s{sT}, 4096")
                    a(f"s_mov_b32 m0, s{sM}"); a("s_nop 0")
                a(f"buffer_load_dwordx4 v{vDma}, {sr(sW,4)}, s{sT} offen offset:{1024*(m%4)} {self.ntw} lds")
        def wv_regs():
            a("s_waitcnt vmcnt(0)")
            a(f"v_bfe_u32 v{vT}, v1, 2, 2"); a(f"v_lshrrev_b32 v{vT2}, 5, v1"); a(f"v_lshl_add_u32 v{vT}, v{vT2}, 2, v{vT}")
            a(f"v_mul_u32_u24 v{vT}, 48, v{vT}"); a(f"v_add_u32 v{vT}, s56, v{vT}")
            a(f"v_and_b32 v{vT2}, 3, v1"); a(f"v_lshl_add_u32 v{vA0}, v{vT2}, 3, v{vT}")
            a(f"v_add_u32 v{vA2}, {4608+16}, v{vA0}")
            a(f"v_add_u32 v{vA1}, 32, v{vA0}"); a(f"v_add_u32 v{vA3}, {4608-16}, v{vA0}")
            a(f"v_cmp_le_u32 vcc, 2, v{vT2}"); a(f"v_cndmask_b32 v{vA1}, v{vA1}, v{vA3}, vcc")
            n = 0
            for tau in range(3):
                for sp in range(6):
                    for e in range(2):
                        a(f"ds_read_b64_tr_b16 {vr(WV+(tau*6+sp)*4+2*e,2)}, v{(vA0,vA1,vA2)[tau]} offset:{(16*sp + 8*e)*48}")
            a(f"v_bfe_u32 v{vT}, v1, 4, 1"); a(f"v_bfe_u32 v{vT2}, v1, 3, 1")
            a(f"v_add_u32 v{vA0}, -1, v{vT}")
            a(f"v_sub_u32 v{vA2}, 0, v{vT}")
            a(f"v_xor_b32 v{vA1}, v{vT}, v{vT2}"); a(f"v_add_u32 v{vA1}, -1, v{vA1}")
            a("s_waitcnt lgkmcnt(0)")
            for tau in range(3):
                for i in range(24): a(f"v_and_b32 v{WV+tau*24+i}, v{(vA0,vA1,vA2)[tau]}, v{WV+tau*24+i}")
        def tile(r, slow):
            lg = Ctr(a, "lgkmcnt", 15)
            s_stage(lg); s_mfma(lg, True); adv()
            for s in range(2):
                for i in range(8):
                    x = S + 8 * s + i
                    if slow: a(f"v_sub_f32 v{x}, v{x}, v{vM}")
                    a(f"v_exp_f32 v{x}, v{x}")
                for i in range(4): a(f"v_cvt_pk_bf16_f32 v{P+4*s+i}, v{S+8*s+2*i}, v{S+8*s+2*i+1}")
                for T in range(3):
                    lg.wait(f"t{s}{T}")
                    a(f"v_mfma_f32_32x32x16_bf16 {vr(U+16*T,16)}, {vr(UA+(s*3+T)*4,4)}, {vr(P+4*s,4)}, {vr(U+16*T,16)}")
                for i in range(4): a(f"v_dot2_f32_bf16 v{vL}, v{P+4*s+i}, v{vOnes}, v{vL}")
        for r in range(9):
            wait_tile(r)
            if r in (0, 4, 8): self.stamp()
            tile(r, False)
            if r == 1: wv_dma()
            if r == 5: wv_regs()
        nst_save = self.nst
        a(f"s_branch {LEPI}")
        a(f"{LSLOW}:")
        a(f"v_mov_b32 v{vM}, 0xff800000")
        for r in range(9):
            wait_tile(r)
            lg = Ctr(a, "lgkmcnt", 15)
            s_stage(lg); s_mfma(lg, False); adv()
            for i in range(8): a(f"v_max3_f32 v{vM}, v{S+2*i}, v{S+2*i+1}, v{vM}")
        adv(-1)
        a(f"v_mov_b32 v{vT2}, v{vM}"); a(f"v_permlane32_swap_b32 v{vM}, v{vT2}"); a(f"v_max_f32 v{vM}, v{vM}, v{vT2}")
        wv_dma(); wv_regs()
        a(f"v_lshlrev_b32 v{vT}, 2, v1"); a(f"v_add_u32 v{vT2}, s56, v{vT}"); a(f"ds_write_b32 v{vT2}, v{vM} offset:8192")
        a(f"s_lshl_b32 s{sT}, s{sHP}, 2"); a(f"v_add_u32 v{vT3}, s{sT}, v{vFlag}")
        self.flag_add(vT3, F_MX, vOne)
        self.poll(vT3, F_MX, 2, vT4, sT)
        a(f"s_xor_b32 s{sT}, s{sA}, 1"); a(f"s_mul_i32 s{sT}, s{sT}, 9216"); a(f"s_add_u32 s{sT}, s{sT}, {WQ}")
        a(f"v_add_u32 v{vT2}, s{sT}, v{vT}"); a(f"ds_read_b32 v{vT2}, v{vT2} offset:8192"); a("s_waitcnt lgkmcnt(0)")
        a(f"v_max_f32 v{vM}, v{vM}, v{vT2}")
        for r in range(9): tile(r, True)
        a(f"{LEPI}:")
        self.nst = nst_save
        self.stamp()
        PB = SA; DP = S
        for i in range(24): a(f"v_cvt_pk_bf16_f32 v{PB+i}, v{U+2*i}, v{U+2*i+1}")
        for sp in range(6):
            for tau in range(3):
                d = vr(DP + 4 * tau, 4)
                a(f"v_mfma_f32_16x16x32_bf16 {d}, {vr(WV+(tau*6+sp)*4,4)}, {vr(PB+4*sp,4)}, {d if sp else 0}")
            if sp == 0:
                a(f"v_mov_b32 v{vT}, v{vL}"); a(f"v_permlane32_swap_b32 v{vL}, v{vT}"); a(f"v_add_f32 v{DP+12}, v{vL}, v{vT}")
            if sp == 1:
                a(f"v_mov_b32 v{DP+13}, v{DP+12}"); a(f"v_permlane16_swap_b32 v{DP+12}, v{DP+13}")
            if sp == 2:
                a(f"v_mov_b32 v{DP+14}, v{vM}"); a(f"v_mov_b32 v{DP+15}, v{vM}"); a(f"v_permlane16_swap_b32 v{DP+14}, v{DP+15}")
            if sp == 3:
                a(f"s_or_b32 s{sT}, s{sA}, 1"); a(f"s_mul_i32 s{sT}, s{sT}, 9216"); a(f"s_add_u32 s{sT}, s{sT}, {WQ}"); a(f"v_add_u32 v{vT2}, s{sT}, v{vDma}")
                a(f"s_lshl_b32 s{sT}, s{sHP}, 2"); a(f"v_add_u32 v{vT3}, s{sT}, v{vFlag}")
        LK0 = self.lab("Lk0")
        a(f"s_cmp_eq_u32 s{sKH}, 0"); a(f"s_cbranch_scc1 {LK0}")
        for i in range(4): a(f"ds_write_b128 v{vT2}, {vr(DP+4*i,4)} offset:{1024*i}")
        self.flag_add(vT3, F_CMB, vOne)
        n0 = self.nst
        self.stamp(); self.stamp_store(44)
        a("s_endpgm")
        a(f"{LK0}:")
        self.nst = n0
        a(f"v_and_b32 v{vT4}, 15, v1"); a(f"v_lshlrev_b32 v{vT4}, 16, v{vT4}"); a(f"v_lshrrev_b32 v{vT5}, 4, v1"); a(f"v_lshl_add_u32 v{vT4}, v{vT5}, 5, v{vT4}")
        a(f"s_lshl_b32 s57, s2, 8"); a(f"s_lshl_b32 s58, s{sHP}, 7"); a("s_add_u32 s57, s57, s58")
        self.srd(sW, 38, 1 << 20)
        self.poll(vT3, F_CMB, 1, vT, sT, sleep=0)
        for i in range(4): a(f"ds_read_b128 {vr(UA+4*i,4)}, v{vT2} offset:{1024*i}")
        a(f"v_mov_b32 v{vT}, s{sSlow}")
        a(f"v_cmp_eq_u32 vcc, 1, v{vT5}"); a(f"v_cndmask_b32 v{DP+14}, v{vT}, v{DP+14}, vcc"); a(f"v_cndmask_b32 v{DP+15}, v{vT}, v{DP+15}, vcc")
        a(f"v_cmp_eq_u32 vcc, 0, v{vT5}")
        a("s_waitcnt lgkmcnt(0)")
        for i in range(7): a(f"v_pk_add_f32 {vr(DP+2*i,2)}, {vr(DP+2*i,2)}, {vr(UA+2*i,2)}")
        for i in range(6): a(f"v_cvt_pk_bf16_f32 v{P+i}, v{DP+2*i}, v{DP+2*i+1}")
        a(f"v_cndmask_b32 v{P+6}, v{DP+14}, v{DP+12}, vcc"); a(f"v_cndmask_b32 v{P+7}, v{DP+15}, v{DP+13}, vcc")
        a(f"buffer_store_dwordx4 {vr(P,4)}, v{vT4}, {sr(sW,4)}, s57 offen")
        a(f"buffer_store_dwordx4 {vr(P+4,4)}, v{vT4}, {sr(sW,4)}, s57 offen offset:16")
        self.stamp(); self.stamp_store(44)
        a("s_endpgm")

    def main_kernel(self):
        a = self.a
        a(".text"); a(f".globl {NAME}_kernel"); a(".p2align 8"); a(f".type {NAME}_kernel,@function"); a(f"{NAME}_kernel:")
        a("s_cmp_ge_u32 s2, 256"); a("s_cbranch_scc1 L_exit")
        self.nst = 0; self.stamp()
        a("s_load_dwordx16 s[16:31], s[0:1], 0"); a("s_load_dwordx8 s[32:39], s[0:1], 64")
        a("v_lshrrev_b32 v2, 6, v0"); a("v_and_b32 v1, 63, v0"); a("v_readfirstlane_b32 s3, v2")
        if self.safe: a("s_mov_b32 s15, 100000")
        a("s_waitcnt lgkmcnt(0)")
        self.stamp()
        a("s_cmp_ge_u32 s3, 4"); a("s_cbranch_scc1 L_att")
        self.helper()
        a("L_att:")
        self.attention()
        a("L_exit:"); a("s_endpgm")

    def fin_kernel(self):
        a = self.a
        WO = 0; SUM = 18432; MX = SUM + 512; DUMP = SUM + 1024
        a(".text"); a(".globl fin_kernel"); a(".p2align 8"); a(".type fin_kernel,@function"); a("fin_kernel:")
        a("s_cmp_ge_u32 s2, 16"); a("s_cbranch_scc1 F_exit")
        a("s_load_dwordx2 s[16:17], s[0:1], 0"); a("s_load_dwordx2 s[30:31], s[0:1], 56"); a("s_load_dwordx2 s[34:35], s[0:1], 72"); a("s_load_dwordx2 s[38:39], s[0:1], 88")
        a("v_lshrrev_b32 v2, 6, v0"); a("v_and_b32 v1, 63, v0"); a("v_readfirstlane_b32 s3, v2")
        vDma, vT, vT2, vT3, vT4, vA0, vA1, vA2, vQ = 2, 3, 4, 5, 6, 7, 8, 9, 10
        ACC = 12; LD = 24; WOP = 56; BO = 68; vM0, vM1 = 100, 101
        a(f"v_lshlrev_b32 v{vDma}, 4, v1")
        a(f"v_lshlrev_b32 v{vT}, 2, v0"); a(f"v_mov_b32 v{vT2}, 0"); a(f"v_mov_b32 v{vT3}, 0xff800000")
        a(f"v_cmp_gt_u32 vcc, 128, v0"); a(f"v_cndmask_b32 v{vT2}, v{vT3}, v{vT2}, vcc")
        a(f"v_cmp_gt_u32 vcc, 256, v0"); a("s_and_saveexec_b64 s[8:9], vcc"); a(f"ds_write_b32 v{vT}, v{vT2} offset:{SUM}"); a("s_mov_b64 exec, -1")
        a("s_waitcnt lgkmcnt(0)")
        self.srd(40, 38, 1 << 20); self.srd(44, 30, 18432); self.srd(48, 16, 3072); self.srd(52, 34, 3072)
        a("s_lshl_b32 s4, s2, 16"); a("s_lshl_b32 s5, s3, 13"); a("s_add_u32 s4, s4, s5"); a("s_add_u32 s5, s4, 4096")
        for i in range(8): a(f"buffer_load_dwordx4 {vr(LD+4*i,4)}, v{vDma}, s[40:43], s{4 + i//4} offen offset:{1024*(i%4)}")
        for k in range(3):
            if k == 2: a("s_cmp_ge_u32 s3, 2"); a("s_cbranch_scc1 F_skip")
            a(f"s_lshl_b32 s6, s3, 10"); a(f"s_add_u32 s6, s6, {8192*k}"); a("s_mov_b32 m0, s6"); a("s_nop 0")
            a(f"buffer_load_dwordx4 v{vDma}, s[44:47], s6 offen lds")
        a("F_skip:")
        a(f"v_lshrrev_b32 v{vT4}, 4, v1"); a(f"v_lshlrev_b32 v{vT}, 3, v{vT4}"); a("s_mul_i32 s7, s2, 192"); a("s_lshl_b32 s6, s3, 5"); a("s_add_u32 s7, s7, s6")
        a(f"buffer_load_dwordx2 {vr(vQ,2)}, v{vT}, s[48:51], s7 offen")
        a("s_mov_b32 s10, 0x00003f80"); a("s_mov_b32 s11, 0x3f800000")
        for i in range(12): a(f"v_mov_b32 v{ACC+i}, 0")
        a(f"v_bfe_u32 v{vT}, v1, 3, 1"); a(f"v_mul_u32_u24 v{vT}, 48, v{vT}"); a(f"v_bfe_u32 v{vT2}, v1, 1, 2"); a(f"v_lshl_add_u32 v{vT}, v{vT2}, 2, v{vT}")
        a(f"v_bfe_u32 v{vT3}, v1, 4, 1"); a(f"v_lshlrev_b32 v{vT3}, 1, v{vT3}"); a(f"v_bfe_u32 v{vA2}, v1, 5, 1"); a(f"v_or_b32 v{vT3}, v{vT3}, v{vA2}")
        a(f"v_add_u32 v{vT}, v{vT}, v{vT3}")
        a(f"v_and_b32 v{vA2}, 1, v1"); a(f"v_lshl_add_u32 v{vA0}, v{vA2}, 5, v{vT}"); a(f"v_lshlrev_b32 v{vA0}, 2, v{vA0}"); a(f"v_add_u32 v{vA0}, {SUM}, v{vA0}")
        a(f"v_lshlrev_b32 v{vA1}, 2, v{vT}"); a(f"v_add_u32 v{vA1}, {SUM+64}, v{vA1}")
        a(f"v_lshlrev_b32 v{vT}, 2, v1"); a(f"v_add_u32 v{vT}, {DUMP}, v{vT}")
        a(f"v_cmp_eq_u32 vcc, 1, v{vA2}"); a(f"v_cndmask_b32 v{vA1}, v{vA1}, v{vT}, vcc")
        a(f"v_bfe_u32 v{vA2}, v1, 3, 1"); a(f"v_lshl_add_u32 v{vA2}, v{vA2}, 1, v{vT3}"); a(f"v_lshlrev_b32 v{vA2}, 2, v{vA2}"); a(f"v_add_u32 v{vA2}, {SUM+384}, v{vA2}")
        a(f"v_and_b32 v{vT2}, 7, v1"); a(f"v_cmp_eq_u32 vcc, 1, v{vT2}"); a(f"v_cmp_gt_u32 s[8:9], 2, v{vT3}"); a("s_and_b64 vcc, vcc, s[8:9]")
        a(f"v_cndmask_b32 v{vA2}, v{vT}, v{vA2}, vcc")
        a("s_waitcnt vmcnt(0)")
        a("s_barrier")
        a(f"v_cmp_eq_u32 vcc, 5, v{vT2}"); a(f"v_cmp_ne_u32 s[8:9], 0, v{LD+2}"); a("s_and_b64 s[56:57], vcc, s[8:9]")
        a(f"v_and_b32 v{vT}, 15, v1"); a(f"v_lshrrev_b32 v{vT3}, 2, v{vT}"); a(f"v_lshl_add_u32 v{vT3}, v{vT4}, 3, v{vT3}"); a(f"v_mul_u32_u24 v{vT3}, 192, v{vT3}")
        a(f"v_and_b32 v{vT}, 3, v1"); a(f"v_lshl_add_u32 v{vT3}, v{vT}, 3, v{vT3}"); a("s_min_u32 s6, s3, 5"); a("s_lshl_b32 s6, s6, 5"); a(f"v_add_u32 v{vT3}, s6, v{vT3}")
        for ks in range(3):
            for e in range(2): a(f"ds_read_b64_tr_b16 {vr(WOP+4*ks+2*e,2)}, v{vT3} offset:{(32*ks+4*e)*192}")
        a("s_cmp_lg_u64 s[56:57], 0"); a("s_cbranch_scc1 F_slow")
        def accum(i):
            for d in range(4):
                a(f"v_dot2_f32_bf16 v{ACC+2*d}, v{LD+4*i+d}, s10, v{ACC+2*d}"); a(f"v_dot2_f32_bf16 v{ACC+2*d+1}, v{LD+4*i+d}, s11, v{ACC+2*d+1}")
            a(f"v_add_f32 v{ACC+8}, v{LD+4*i+2}, v{ACC+8}"); a(f"v_add_f32 v{ACC+9}, v{LD+4*i+3}, v{ACC+9}")
        for i in range(8): accum(i)
        a("s_branch F_red")
        a("F_slow:")
        a(f"v_and_b32 v{vT}, 56, v1"); a(f"v_or_b32 v{vT}, 3, v{vT}"); a(f"v_lshlrev_b32 v{vT}, 2, v{vT}")
        MB = 104
        for i in range(8):
            a(f"ds_bpermute_b32 v{MB+2*i}, v{vT}, v{LD+4*i+2}"); a(f"ds_bpermute_b32 v{MB+2*i+1}, v{vT}, v{LD+4*i+3}")
        a(f"v_bfe_u32 v{vT3}, v1, 3, 1"); a(f"v_lshlrev_b32 v{vT3}, 3, v{vT3}")
        a("s_waitcnt lgkmcnt(0)")
        a(f"v_mov_b32 v{vM0}, v{MB}"); a(f"v_mov_b32 v{vM1}, v{MB+1}")
        for i in range(1, 8): a(f"v_max_f32 v{vM0}, v{vM0}, v{MB+2*i}"); a(f"v_max_f32 v{vM1}, v{vM1}, v{MB+2*i+1}")
        a(f"ds_max_f32 v{vT3}, v{vM0} offset:{MX}"); a(f"ds_max_f32 v{vT3}, v{vM1} offset:{MX+4}")
        a("s_waitcnt lgkmcnt(0)"); a("s_barrier")
        a(f"ds_read_b64 {vr(vM0,2)}, v{vT3} offset:{MX}"); a("s_waitcnt lgkmcnt(0)")
        a(f"v_and_b32 v{vT}, 1, v1"); a(f"v_cmp_eq_u32 s[12:13], 1, v{vT}"); a(f"v_bfe_u32 v{vT}, v1, 2, 1"); a(f"v_cmp_eq_u32 s[14:15], 1, v{vT}")
        for i in range(8):
            m0, m1 = MB + 2 * i, MB + 2 * i + 1
            a(f"v_sub_f32 v{m0}, v{m0}, v{vM0}"); a(f"v_sub_f32 v{m1}, v{m1}, v{vM1}"); a(f"v_exp_f32 v{m0}, v{m0}"); a(f"v_exp_f32 v{m1}, v{m1}")
            a(f"v_cndmask_b32 v{vT}, v{m0}, v{m1}, s[12:13]"); a(f"v_cndmask_b32 v{vT3}, v{m0}, v{m1}, s[14:15]")
            for d in range(4):
                sc = vT if d < 2 else vT3
                a(f"v_lshlrev_b32 v{BO}, 16, v{LD+4*i+d}"); a(f"v_and_b32 v{BO+1}, 0xffff0000, v{LD+4*i+d}")
                a(f"v_fmac_f32 v{ACC+2*d}, v{BO}, v{sc}"); a(f"v_fmac_f32 v{ACC+2*d+1}, v{BO+1}, v{sc}")
            a(f"v_fmac_f32 v{ACC+8}, v{LD+4*i+2}, v{m0}"); a(f"v_fmac_f32 v{ACC+9}, v{LD+4*i+3}, v{m1}")
        a("F_red:")
        for k in range(3):
            x = ACC + 4 * k
            a(f"v_permlane32_swap_b32 v{x}, v{x+1}"); a(f"v_permlane32_swap_b32 v{x+2}, v{x+3}")
            a(f"v_add_f32 v{x}, v{x}, v{x+1}"); a(f"v_add_f32 v{x+2}, v{x+2}, v{x+3}")
        for k in range(3):
            x = ACC + 4 * k
            a(f"v_permlane16_swap_b32 v{x}, v{x+2}"); a(f"v_add_f32 v{x}, v{x}, v{x+2}")
            a(f"ds_add_f32 v{(vA0,vA1,vA2)[k]}, v{x}")
        a("s_waitcnt lgkmcnt(0)"); a("s_barrier")
        a("s_cmp_ge_u32 s3, 6"); a("s_cbranch_scc1 F_exit")
        a(f"v_lshlrev_b32 v{vT}, 5, v{vT4}")
        for ks in range(3):
            a(f"ds_read_b128 {vr(LD+8*ks,4)}, v{vT} offset:{SUM+128*ks}"); a(f"ds_read_b128 {vr(LD+8*ks+4,4)}, v{vT} offset:{SUM+128*ks+16}")
        a(f"v_mov_b32 v{vT2}, 0"); a(f"ds_read_b128 {vr(ACC,4)}, v{vT2} offset:{SUM+384}")
        a(f"v_cmp_le_u32 s[12:13], 3, v{vT4}"); a(f"v_cmp_le_u32 s[14:15], 2, v{vT4}"); a(f"v_cmp_le_u32 s[8:9], 1, v{vT4}")
        a("s_waitcnt lgkmcnt(0)")
        for h in range(4): a(f"v_rcp_f32 v{ACC+h}, v{ACC+h}")
        a(f"v_cndmask_b32 v{ACC+4}, v{ACC}, v{ACC+1}, s[12:13]"); a(f"v_cndmask_b32 v{ACC+5}, v{ACC+1}, v{ACC+2}, s[14:15]"); a(f"v_cndmask_b32 v{ACC+6}, v{ACC+2}, v{ACC+3}, s[8:9]")
        for ks in range(3):
            for i in range(8): a(f"v_mul_f32 v{LD+8*ks+i}, v{ACC+4+ks}, v{LD+8*ks+i}")
            for i in range(4): a(f"v_cvt_pk_bf16_f32 v{BO+4*ks+i}, v{LD+8*ks+2*i}, v{LD+8*ks+2*i+1}")
        for ks in range(3): a(f"v_mfma_f32_16x16x32_bf16 {vr(ACC+8,4)}, {vr(WOP+4*ks,4)}, {vr(BO+4*ks,4)}, {vr(ACC+8,4) if ks else 0}")
        a(f"v_lshlrev_b32 v{ACC}, 16, v{vQ}"); a(f"v_and_b32 v{ACC+1}, 0xffff0000, v{vQ}"); a(f"v_lshlrev_b32 v{ACC+2}, 16, v{vQ+1}"); a(f"v_and_b32 v{ACC+3}, 0xffff0000, v{vQ+1}")
        a(f"v_lshlrev_b32 v{vT}, 3, v{vT4}"); a(f"v_and_b32 v{vT2}, 15, v1"); a(f"v_cmp_eq_u32 vcc, 0, v{vT2}")
        a(f"v_cvt_pk_bf16_f32 v{ACC+4}, v{ACC+8}, v{ACC+9}"); a(f"v_cvt_pk_bf16_f32 v{ACC+5}, v{ACC+10}, v{ACC+11}")
        a(f"v_lshlrev_b32 v{ACC+8}, 16, v{ACC+4}"); a(f"v_and_b32 v{ACC+9}, 0xffff0000, v{ACC+4}"); a(f"v_lshlrev_b32 v{ACC+10}, 16, v{ACC+5}"); a(f"v_and_b32 v{ACC+11}, 0xffff0000, v{ACC+5}")
        for i in range(4): a(f"v_add_f32 v{ACC+i}, v{ACC+i}, v{ACC+8+i}")
        a(f"v_cvt_pk_bf16_f32 v{ACC+4}, v{ACC}, v{ACC+1}"); a(f"v_cvt_pk_bf16_f32 v{ACC+5}, v{ACC+2}, v{ACC+3}")
        a("s_and_saveexec_b64 s[8:9], vcc")
        a(f"buffer_store_dwordx2 {vr(ACC+4,2)}, v{vT}, s[52:55], s7 offen")
        a("F_exit:"); a("s_endpgm")

    def desc(self, name, nv, ns):
        return f"""
.amdhsa_kernel {name}
  .amdhsa_next_free_vgpr {nv}
  .amdhsa_next_free_sgpr {ns}
  .amdhsa_accum_offset {(nv+3)//4*4}
  .amdhsa_group_segment_fixed_size 0
  .amdhsa_kernarg_size 96
  .amdhsa_user_sgpr_count 2
  .amdhsa_user_sgpr_kernarg_segment_ptr 1
  .amdhsa_system_sgpr_workgroup_id_x 1
  .amdhsa_float_denorm_mode_32 3
.end_amdhsa_kernel
"""
    def build(self):
        self.main_kernel(); self.fin_kernel()
        hdr = open("cdna_kernels/%s.s.ref" % NAME).read().split("; Override")[0]
        hdr += f"; @launch kernel={NAME}_kernel grid=(256,1,1) block=(512,1,1) lds={LDS_MAIN}\n"
        hdr += f"; @launch kernel=fin_kernel grid=(16,1,1) block=(512,1,1) lds=20480\n"
        hdr += '.amdgcn_target "amdgcn-amd-amdhsa--gfx950"\n'
        body = self.a.render(verbose=True)
        tail = '.section .rodata,"a"\n.p2align 6' + self.desc(NAME + "_kernel", 256, 96) + ".p2align 6" + self.desc("fin_kernel", 128, 64)
        return hdr + body + tail

if __name__ == "__main__":
    open("k1.s", "w").write(Gen().build())
    open("k1_st.s", "w").write(Gen(stamps=True).build())
    open("k1_slow.s", "w").write(Gen(force_slow=True).build())
    open("k1_w.s", "w").write(Gen(ntw="nt").build())
```

```python
import sys, struct, math
from asmlib import Asm
NAME = "standalone__detection_seg_mask2former__vision"
def f2u(x): return struct.unpack("<I", struct.pack("<f", x))[0]
def hx(x): return "0x%08x" % (x & 0xffffffff)

RS = 12288; SL = 3072
WQ = 110592; WM = 129024; WK23 = 147456; FLAGS = 156672; QS = 156928; SUM = 160000; MX = SUM + 512; DUMP = SUM + 1024; LDS_MAIN = 163840
WK01 = 5 * RS; WLAT = 7 * RS; LO2 = WLAT + 18432
CMB = WK23
MXS = QS + 256
F_P = 0; F_WL = 16; F_W1 = 20; F_W2 = 24; F_W3 = 28; F_DONE = 32; F_WV = 36; F_CMB = 40; F_MX = 48; F_WO = 56; F_FIN = 60; F_FMX = 64; F_CLR = 68
LOG2E = 1.4426950408889634
BOUND = 64.0
STAMP_OFF = 0x1000000
NFIN = 16

class Ctr:
    def __init__(self, a, name, mx): self.a = a; self.name = name; self.mx = mx; self.q = []
    def issue(self, tag): self.q.append(tag)
    def wait(self, tag):
        if tag not in self.q: return
        idx = max(i for i, t in enumerate(self.q) if t == tag)
        n = min(len(self.q) - 1 - idx, self.mx)
        self.a(f"s_waitcnt {self.name}({n})")
        self.q = self.q[len(self.q) - n:] if n else []
    def wait_n(self, n):
        if len(self.q) > n:
            self.a(f"s_waitcnt {self.name}({n})"); self.q = self.q[len(self.q) - n:] if n else []

def vr(b, n=1): return f"v{b}" if n == 1 else f"v[{b}:{b+n-1}]"
def sr(b, n=1): return f"s{b}" if n == 1 else f"s[{b}:{b+n-1}]"

class Gen:
    def __init__(self, stamps=False, force_slow=False, safe=True, nts="", kw=5, pk=0, hprio=0, aprio=0, D=3):
        self.a = Asm(); self.stamps = stamps; self.nl = 0; self.force_slow = force_slow
        self.nst = 0; self.safe = safe; self.nts = nts; self.kw = kw; self.pk = pk; self.hprio = hprio; self.aprio = aprio; self.D = D
    def lab(self, s="L"):
        self.nl += 1; return f"{s}_{self.nl}"
    def stamp(self, idx=None):
        if self.stamps:
            if idx is None: idx = self.nst; self.nst += 1
            assert idx < 15
            self.a(f"s_memrealtime s[{66+2*idx}:{67+2*idx}]")
    def stamp_if(self, sreg, val, idx):
        if self.stamps:
            L = self.lab(); self.a(f"s_cmp_lg_u32 s{sreg}, {val}"); self.a(f"s_cbranch_scc1 {L}"); self.stamp(idx); self.a(f"{L}:")
    def stamp_store(self, vt):
        if not self.stamps: return
        a = self.a
        a("s_waitcnt lgkmcnt(0)")
        a("s_lshl_b32 s60, s2, 3"); a("s_add_u32 s60, s60, s3"); a("s_lshl_b32 s60, s60, 6"); a(f"s_add_u32 s60, s60, {STAMP_OFF}")
        a("s_add_u32 s62, s38, s60"); a("s_addc_u32 s63, s39, 0")
        a("s_mov_b64 exec, 1")
        for i in range(16): a(f"v_mov_b32 v{vt+i}, " + (f"s{66+2*i}" if i < 15 else "0"))
        a(f"v_mov_b32 v{vt+16}, 0")
        for i in range(4): a(f"global_store_dwordx4 v{vt+16}, v[{vt+4*i}:{vt+4*i+3}], s[62:63] offset:{16*i}")
        a("s_mov_b64 exec, -1")
    def srd(self, d, p, nbytes):
        a = self.a
        a(f"s_mov_b32 s{d}, s{p}"); a(f"s_mov_b32 s{d+1}, s{p+1}"); a(f"s_mov_b32 s{d+2}, {nbytes}"); a(f"s_mov_b32 s{d+3}, 0x20000")
    def poll(self, vflag, off, target, vt, st, sleep=1):
        a = self.a; L = self.lab("Lpoll"); D = self.lab("Lpd")
        a(f"{L}:")
        a(f"ds_read_b32 v{vt}, v{vflag} offset:{off}"); a("s_waitcnt lgkmcnt(0)")
        a(f"v_readfirstlane_b32 s{st}, v{vt}"); a(f"s_cmp_ge_u32 s{st}, {target}"); a(f"s_cbranch_scc1 {D}")
        if sleep: a(f"s_sleep {sleep}")
        if self.safe: a("s_sub_u32 s15, s15, 1"); a(f"s_cbranch_scc1 {D}")
        a(f"s_branch {L}"); a(f"{D}:")
    def flag_add(self, vflag, off, vone):
        a = self.a
        a("s_mov_b64 exec, 1"); a(f"ds_add_u32 v{vflag}, v{vone} offset:{off}"); a("s_mov_b64 exec, -1")
    def swap01(self, src, dst, tmp):
        a = self.a
        a(f"v_and_b32 v{dst}, 4, v{src}"); a(f"v_bfe_u32 v{tmp}, v{src}, 1, 1"); a(f"v_or_b32 v{dst}, v{dst}, v{tmp}")
        a(f"v_and_b32 v{tmp}, 1, v{src}"); a(f"v_lshl_or_b32 v{dst}, v{tmp}, 1, v{dst}")
    def dma_quarter(self, vDma, sW, sIdx, base, sT, sM, cb=None):
        a = self.a
        a(f"s_lshl_b32 s{sT}, s{sIdx}, 12"); a(f"s_add_u32 s{sM}, s{sT}, {base}"); a(f"s_mov_b32 m0, s{sM}"); a("s_nop 0")
        for m in range(4):
            if cb: cb()
            a(f"buffer_load_dwordx4 v{vDma}, {sr(sW,4)}, s{sT} offen offset:{1024*m} lds")
        a(f"s_and_b32 s{sT}, s{sIdx}, 1"); a(f"s_lshl_b32 s{sT}, s{sT}, 10"); a(f"s_add_u32 s{sT}, s{sT}, 16384"); a(f"s_add_u32 s{sM}, s{sT}, {base}"); a(f"s_mov_b32 m0, s{sM}")
        Ls = self.lab()
        if cb: cb()
        a(f"s_cmp_ge_u32 s{sIdx}, 2"); a(f"s_cbranch_scc1 {Ls}")
        a(f"buffer_load_dwordx4 v{vDma}, {sr(sW,4)}, s{sT} offen lds")
        a(f"{Ls}:")

    def helper(self):
        a = self.a; vm = Ctr(a, "vmcnt", 63); lg = Ctr(a, "lgkmcnt", 15)
        D = self.D
        vDma, vHi, vGWE, vGWO, vGR0, vGR1, vKW, vPA, vFlag, vLoR, vWL, vOne, vT, vT2, vT3, vT4 = range(2, 18)
        vS1, vS2, vRs = 18, 20, 22; vC96 = 252
        X = 24; G = 48; G4 = 72; FB = 96
        BOP = 168; WOP = 204; DD = 228
        assert FB + D * 12 <= BOP
        sHI, sLO, sP = 40, 44, 48
        sB, sB4, sOffN, sR, sBuf, sT, sT2, sM = 52, 53, 54, 55, 56, 57, 58, 59
        sOneLo, sOneHi = 4, 5
        nts = self.nts
        self.srd(sLO, 20, 7077888)
        a(f"v_lshlrev_b32 v{vDma}, 4, v1")
        a(f"s_mul_i32 s{sT2}, s2, 18"); a(f"s_lshl_b32 s{sB}, s3, 2"); a(f"s_add_u32 s{sB}, s{sB}, s{sT2}")
        a(f"s_mul_i32 s6, s3, {SL}"); a(f"s_mul_i32 s{sT}, s{sB}, 1536")
        for s in range(2):
            a(f"s_add_u32 s{sM}, s6, {(1+2*s)*RS}"); a(f"s_mov_b32 m0, s{sM}")
            if s: a(f"s_add_u32 s{sT}, s{sT}, 3072")
            else: a("s_nop 0")
            for m in range(3):
                a(f"buffer_load_dwordx4 v{vDma}, {sr(sLO,4)}, s{sT} offen offset:{1024*m} {nts} lds"); vm.issue("lo")
        a(f"s_and_b32 s{sB4}, s3, 1"); a(f"s_add_u32 s{sB4}, s{sB4}, s{sT2}"); a(f"s_add_u32 s{sB4}, s{sB4}, 16")
        a(f"s_mul_i32 s{sM}, s3, 1536"); a(f"s_add_u32 s{sM}, s{sM}, {LO2}"); a(f"s_mov_b32 m0, s{sM}")
        a(f"s_mul_i32 s{sT}, s{sB4}, 1536")
        a(f"buffer_load_dwordx4 v{vDma}, {sr(sLO,4)}, s{sT} offen {nts} lds"); vm.issue("lo")
        a("s_mov_b32 exec_hi, 0")
        a(f"buffer_load_dwordx4 v{vDma}, {sr(sLO,4)}, s{sT} offen offset:1024 {nts} lds"); vm.issue("lo")
        a("s_mov_b32 exec_hi, -1")
        self.srd(sP, 38, 1 << 20); self.srd(sHI, 18, 28311552)
        a(f"v_lshrrev_b32 v{vT}, 4, v1"); a(f"v_lshlrev_b32 v{vT}, 16, v{vT}"); a(f"v_and_b32 v{vT2}, 15, v1"); a(f"v_lshl_add_u32 v{vT}, v{vT2}, 4, v{vT}")
        a(f"s_lshl_b32 s{sT}, s3, 18"); a(f"s_lshl_b32 s{sT2}, s2, 8"); a(f"s_add_u32 s{sT}, s{sT}, s{sT2}")
        for i in range(4): a(f"v_mov_b32 v{X+i}, -1")
        a(f"buffer_store_dwordx4 {vr(X,4)}, v{vT}, {sr(sP,4)}, s{sT} offen sc0 sc1"); vm.issue("clr")
        a("s_barrier")
        if self.hprio: a(f"s_setprio {self.hprio}")
        a(f"v_mov_b32 v{vFlag}, {FLAGS}"); a(f"v_mov_b32 v{vOne}, 1")
        a(f"v_lshrrev_b32 v{vT}, 2, v1"); a(f"v_and_b32 v{vT2}, 3, v1")
        a(f"v_mul_u32_u24 v{vHi}, 192, v{vT}"); a(f"v_lshl_add_u32 v{vHi}, v{vT2}, 4, v{vHi}")
        def blk_off(src):
            a(f"s_mul_hi_u32 s{sT}, s{src}, 0x0aaaaaab"); a(f"s_mul_i32 s{sT2}, s{sT}, 24"); a(f"s_sub_u32 s{sT2}, s{src}, s{sT2}")
            a(f"s_mul_i32 s{sT}, s{sT}, 147456"); a(f"s_mul_i32 s{sT2}, s{sT2}, 3072"); a(f"s_add_u32 s{sOffN}, s{sT}, s{sT2}")
        def loads(buf):
            for ks in range(3): a(f"buffer_load_dwordx4 {vr(FB+buf*12+ks*4,4)}, v{vHi}, {sr(sHI,4)}, s{sOffN} offen offset:{ks*64} {nts}")
        def static_issue(u):
            if u & 1: a(f"s_add_u32 s{sOffN}, s{sOffN}, 73728")
            else:
                if u: a(f"s_add_u32 s{sB}, s{sB}, 1")
                blk_off(sB)
            loads(u)
            for _ in range(3): vm.issue(f"u{u}")
        a(f"v_lshrrev_b32 v{vT3}, 1, v{vT2}"); a(f"v_lshlrev_b32 v{vT3}, 1, v{vT3}"); a(f"v_lshl_add_u32 v{vT3}, v{vT2}, 2, v{vT3}")
        a(f"v_xor_b32 v{vT3}, v{vT3}, v{vT}"); a(f"v_lshl_add_u32 v{vT3}, v{vT2}, 4, v{vT3}"); a(f"v_lshlrev_b32 v{vT3}, 4, v{vT3}")
        a(f"v_add_u32 v{vKW}, s6, v{vT3}")
        a(f"v_lshrrev_b32 v{vT}, 1, v{vT}"); self.swap01(vT, vT3, vT4)
        a(f"v_lshlrev_b32 v{vT2}, 1, v{vT2}"); a(f"v_xor_b32 v{vT3}, v{vT3}, v{vT2}")
        a(f"v_mul_u32_u24 v{vT}, 0x180, v{vT}"); a(f"v_add_u32 v{vT}, s6, v{vT}")
        a(f"v_lshl_add_u32 v{vGR0}, v{vT3}, 4, v{vT}"); a(f"v_xor_b32 v{vGR1}, 16, v{vGR0}")
        a(f"v_and_b32 v{vT}, 7, v1"); self.swap01(vT, vT3, vT4)
        a(f"v_lshrrev_b32 v{vT2}, 4, v1"); a(f"v_xor_b32 v{vT3}, v{vT3}, v{vT2}")
        a(f"v_mul_u32_u24 v{vT}, 0x180, v{vT}"); a(f"v_bfe_u32 v{vT4}, v1, 3, 1"); a(f"v_mul_u32_u24 v{vT4}, {2*RS}, v{vT4}")
        a(f"v_add3_u32 v{vT}, v{vT}, v{vT4}, s6"); a(f"v_lshl_add_u32 v{vGWE}, v{vT3}, 4, v{vT}"); a(f"v_xor_b32 v{vGWO}, 64, v{vGWE}")
        a(f"v_and_b32 v{vT}, 15, v1"); a(f"v_mul_u32_u24 v{vT3}, 192, v{vT}"); a(f"v_lshl_add_u32 v{vT3}, v{vT2}, 4, v{vT3}")
        a(f"v_add_u32 v{vLoR}, s6, v{vT3}")
        a(f"s_mul_i32 s{sM}, s3, 1536"); a(f"s_add_u32 s{sM}, s{sM}, {LO2}"); a(f"v_add_u32 v{vT4}, s{sM}, v{vT3}")
        a(f"v_lshrrev_b32 v{vT3}, 2, v{vT}"); a(f"v_lshl_add_u32 v{vT3}, v{vT2}, 3, v{vT3}"); a(f"v_mul_u32_u24 v{vT3}, 192, v{vT3}")
        a(f"v_and_b32 v{vT}, 3, v1"); a(f"v_lshl_add_u32 v{vT3}, v{vT}, 3, v{vT3}"); a(f"v_add_u32 v{vWL}, {WLAT}, v{vT3}")
        a(f"v_lshl_add_u32 v{vPA}, s3, 2, v{vFlag}")
        a(f"s_mov_b32 s{sOneLo}, 0x00003f80"); a(f"s_mov_b32 s{sOneHi}, 0x3f800000"); a(f"v_mov_b32 v{vC96}, {hx(f2u(1/96))}")
        vm.wait_n(6); static_issue(0)
        vm.wait("clr")
        self.stamp(2)
        self.flag_add(vFlag, F_CLR, vOne)
        static_issue(1)
        for s in range(3):
            for ks in range(3):
                r = BOP + (s * 3 + ks) * 4
                if s < 2: a(f"ds_read_b128 {vr(r,4)}, v{vLoR} offset:{(1+2*s)*RS + ks*64}")
                else: a(f"ds_read_b128 {vr(r,4)}, v{vT4} offset:{ks*64}")
        self.poll(vFlag, F_WL, 4, vT, sT)
        self.stamp(3)
        def wread(t):
            for ks in range(3):
                for e in range(2):
                    a(f"ds_read_b64_tr_b16 {vr(WOP+(t&1)*12+ks*4+2*e,2)}, v{vWL} offset:{(32*ks + 4*e)*192 + t*32}"); lg.issue(f"w{t}")
        def gwrite(t):
            for s in range(3):
                a(f"ds_write_b128 v{vGWO if t&1 else vGWE}, {vr(DD+(t&1)*12+s*4,4)} offset:{(0,4*RS,RS)[s] + (t>>1)*128}"); lg.issue(f"g{t}")
        wread(0); wread(1)
        for t in range(6):
            lg.wait(f"w{t}")
            for ks in range(3):
                for s in range(3):
                    d = vr(DD + (t & 1) * 12 + s * 4, 4)
                    a(f"v_mfma_f32_16x16x32_bf16 {d}, {vr(WOP+(t&1)*12+ks*4,4)}, {vr(BOP+(s*3+ks)*4,4)}, {d if ks else 0}")
                if ks == 1 and t > 0: gwrite(t - 1)
            if t + 2 < 6: wread(t + 2)
        gwrite(5)
        self.flag_add(vFlag, F_DONE, vOne)
        LX = self.lab()
        a("s_cmp_lg_u32 s3, 0"); a(f"s_cbranch_scc1 {LX}")
        self.poll(vFlag, F_CLR, 4, vT, sT)
        a(f"v_mov_b32 v{vT}, s2"); a("s_mov_b64 exec, 1"); a(f"global_store_byte v{vT}, v{vOne}, s[36:37] sc0 sc1"); a("s_mov_b64 exec, -1")
        a(f"{LX}:")
        for u in range(2, D): static_issue(u)
        def gread(dst, off):
            for ks in range(3):
                for e in range(2): a(f"ds_read_b128 {vr(dst+ks*8+4*e,4)}, v{vGR1 if e else vGR0} offset:{off + ks*128}")
        gread(G, 0); gread(G4, RS)
        self.stamp(4)
        a(f"s_mov_b32 s{sR}, 0"); a(f"s_mov_b32 s{sBuf}, 0")
        LOOP = self.lab("Hloop"); TAIL = self.lab("Htail"); LB = [self.lab("Hb") for _ in range(D)]
        a(f"{LOOP}:")
        L1 = self.lab(); L2 = self.lab(); L3 = self.lab()
        a(f"s_add_u32 s{sM}, s{sR}, {D}")
        a(f"s_cmp_ge_u32 s{sM}, 8"); a(f"s_cbranch_scc1 {L1}")
        a(f"s_add_u32 s{sOffN}, s{sOffN}, 73728"); a(f"s_bitcmp1_b32 s{sM}, 0"); a(f"s_cbranch_scc1 {L3}")
        a(f"s_add_u32 s{sB}, s{sB}, 1"); blk_off(sB); a(f"s_branch {L3}")
        a(f"{L1}:")
        a(f"s_cmp_lg_u32 s{sM}, 8"); a(f"s_cselect_b32 s{sHI+2}, 0, s{sHI+2}"); a(f"s_cbranch_scc1 {L3}")
        blk_off(sB4); a(f"s_lshr_b32 s{sT}, s3, 1"); a(f"s_mul_i32 s{sT}, s{sT}, 73728"); a(f"s_add_u32 s{sOffN}, s{sOffN}, s{sT}")
        a(f"{L3}:")
        for b in range(1, D): a(f"s_cmp_eq_u32 s{sBuf}, {b}"); a(f"s_cbranch_scc1 {LB[b]}")
        for b in range(D):
            a(f"{LB[b]}:")
            a(f"s_waitcnt vmcnt({3*(D-1)}) lgkmcnt(0)")
            if b == 0: self.stamp_if(sR, 0, 5)
            if b == 8 % D: self.stamp_if(sR, 8, 7)
            if b == 4 % D: self.stamp_if(sR, 4, 6)
            fb = FB + b * 12
            for ks in range(3):
                for i in range(4):
                    a(f"v_dot2_f32_bf16 v{X+ks*8+2*i}, v{fb+ks*4+i}, s{sOneLo}, v{G+ks*8+2*i}")
                    a(f"v_dot2_f32_bf16 v{X+ks*8+2*i+1}, v{fb+ks*4+i}, s{sOneHi}, v{G+ks*8+2*i+1}")
            loads(b)
            a(f"s_mov_b32 s{sBuf}, {(b+1)%D}")
            if b < D - 1: a(f"s_branch {TAIL}")
        a(f"{TAIL}:")
        L1 = self.lab(); L2 = self.lab()
        a(f"s_bitcmp0_b32 s{sR}, 0"); a(f"s_cbranch_scc1 {L1}")
        a(f"s_cmp_eq_u32 s{sR}, 7"); a(f"s_cbranch_scc1 {L2}")
        a(f"v_add_u32 v{vGR0}, {2*RS}, v{vGR0}"); a(f"v_add_u32 v{vGR1}, {2*RS}, v{vGR1}"); gread(G, 0)
        a(f"{L1}:")
        if self.pk & 1:
            a(f"v_pk_add_f32 {vr(vS1,2)}, {vr(X,2)}, {vr(X+2,2)}"); a(f"v_pk_mul_f32 {vr(vS2,2)}, {vr(X,2)}, {vr(X,2)}")
            a(f"v_pk_fma_f32 {vr(vS2,2)}, {vr(X+2,2)}, {vr(X+2,2)}, {vr(vS2,2)}")
            for k in range(2, 12):
                a(f"v_pk_add_f32 {vr(vS1,2)}, {vr(vS1,2)}, {vr(X+2*k,2)}"); a(f"v_pk_fma_f32 {vr(vS2,2)}, {vr(X+2*k,2)}, {vr(X+2*k,2)}, {vr(vS2,2)}")
            a(f"v_add_f32 v{vS1}, v{vS1}, v{vS1+1}"); a(f"v_add_f32 v{vS2}, v{vS2}, v{vS2+1}")
        else:
            a(f"v_add_f32 v{vS1}, v{X}, v{X+1}"); a(f"v_mul_f32 v{vS2}, v{X}, v{X}"); a(f"v_fmac_f32 v{vS2}, v{X+1}, v{X+1}")
            for k in range(2, 24): a(f"v_add_f32 v{vS1}, v{vS1}, v{X+k}"); a(f"v_fmac_f32 v{vS2}, v{X+k}, v{X+k}")
        for qp in ("[1,0,3,2]", "[2,3,0,1]"):
            a(f"v_add_f32_dpp v{vS1}, v{vS1}, v{vS1} quad_perm:{qp} row_mask:0xf bank_mask:0xf")
            a(f"v_add_f32_dpp v{vS2}, v{vS2}, v{vS2} quad_perm:{qp} row_mask:0xf bank_mask:0xf")
        a(f"v_mul_f32 v{vS1}, {hx(f2u(-1/96))}, v{vS1}")
        a(f"v_fmaak_f32 v{vS2}, v{vC96}, v{vS2}, {hx(f2u(1e-5))}")
        a(f"v_fma_f32 v{vS2}, -v{vS1}, v{vS1}, v{vS2}")
        a(f"v_max_f32 v{vS2}, {hx(f2u(1e-5))}, v{vS2}")
        a(f"v_rsq_f32 v{vRs}, v{vS2}")
        LP = self.lab(); LPD = self.lab()
        a(f"s_cmp_eq_u32 s{sR}, 5"); a(f"s_cbranch_scc1 {LP}"); a(f"{LPD}:")
        a(f"v_mul_f32 v{vRs+1}, v{vS1}, v{vRs}")
        a(f"s_add_u32 s{sR}, s{sR}, 1"); a(f"v_mov_b32 v{vT}, s{sR}")
        for ks in range(3):
            for k in range(4):
                x = X + ks * 8 + 2 * k
                if self.pk & 2: a(f"v_pk_fma_f32 {vr(x,2)}, {vr(x,2)}, {vr(vRs,2)}, {vr(vRs,2)} op_sel:[0,0,1] op_sel_hi:[1,0,1]")
                else: a(f"v_fma_f32 v{x}, v{x}, v{vRs}, v{vRs+1}"); a(f"v_fma_f32 v{x+1}, v{x+1}, v{vRs}, v{vRs+1}")
            for k in range(4): a(f"v_cvt_pk_bf16_f32 v{X+ks*8+k}, v{X+ks*8+2*k}, v{X+ks*8+2*k+1}")
            a(f"ds_write_b128 v{vKW}, {vr(X+ks*8,4)} offset:{ks*1024}")
        a("s_mov_b64 exec, 1"); a(f"ds_write_b32 v{vPA}, v{vT} offset:{F_P}"); a("s_mov_b64 exec, -1")
        a(f"v_add_u32 v{vKW}, {RS}, v{vKW}")
        a(f"s_cmp_lt_u32 s{sR}, 9"); a(f"s_cbranch_scc1 {LOOP}")
        self.stamp(8)
        a(f"s_cmp_lt_u32 s2, {NFIN}"); a("s_cbranch_scc1 L_fin")
        self.stamp_store(24)
        a("s_endpgm")
        a(f"{L2}:")
        for i in range(24): a(f"v_mov_b32 v{G+i}, v{G4+i}")
        a(f"s_branch {L1}")
        a(f"{LP}:")
        self.poll(vFlag, F_DONE, 8, vT, sT)
        a(f"s_branch {LPD}")
        self.hv = dict(vDma=vDma, vFlag=vFlag, vOne=vOne, sP=sP)

    def finalizer(self):
        a = self.a
        vDma, vFlag, vOne, sP = self.hv["vDma"], self.hv["vFlag"], self.hv["vOne"], self.hv["sP"]
        vT, vT2, vT3, vT4, vA0, vA1, vA2 = 14, 15, 16, 17, 3, 4, 5
        ACC = 24; WOP = 36; BO = 60; vQ = 72; LD = 96; MB = 160; vM0, vM1 = 76, 77
        sT, sM, sPend, sOff, sW = 57, 58, 59, 60, 44
        a("L_fin:")
        a("s_waitcnt vmcnt(0)")
        a(f"v_lshlrev_b32 v{vT}, 2, v1")
        a(f"global_load_dword v{vT2}, v{vT}, s[36:37] sc0 sc1")
        self.srd(sW, 30, 18432)
        self.dma_quarter(vDma, sW, 3, WM, sT, sM)
        self.srd(sW, 16, 3072)
        a(f"v_lshrrev_b32 v{vT4}, 4, v1"); a(f"v_lshlrev_b32 v{vT3}, 3, v{vT4}"); a("s_mul_i32 s7, s2, 192"); a(f"s_lshl_b32 s{sT}, s3, 5"); a(f"s_add_u32 s7, s7, s{sT}")
        a(f"buffer_load_dwordx2 {vr(vQ,2)}, v{vT3}, {sr(sW,4)}, s7 offen"); a(f"buffer_load_dwordx2 {vr(vQ+2,2)}, v{vT3}, {sr(sW,4)}, s7 offen offset:128")
        a(f"s_lshl_b32 s{sT}, s3, 8"); a(f"s_add_u32 s{sT}, s{sT}, {SUM}"); a(f"v_add_u32 v{vT3}, s{sT}, v{vT}"); a(f"s_cmp_ge_u32 s3, 2"); a(f"s_cselect_b32 s{sT}, 0xff800000, 0"); a(f"v_mov_b32 v{ACC}, s{sT}")
        a(f"ds_write_b32 v{vT3}, v{ACC}")
        LW = self.lab("Fw"); LWD = self.lab("Fwd")
        a(f"{LW}:"); a("s_waitcnt vmcnt(0)")
        a(f"v_cmp_ne_u32 vcc, 0x01010101, v{vT2}"); a("s_cmp_eq_u64 vcc, 0"); a(f"s_cbranch_scc1 {LWD}")
        if self.safe: a("s_sub_u32 s15, s15, 1"); a(f"s_cbranch_scc1 {LWD}")
        a("s_sleep 2"); a(f"global_load_dword v{vT2}, v{vT}, s[36:37] sc0 sc1"); a(f"s_branch {LW}")
        a(f"{LWD}:")
        a(f"s_lshl_b32 s{sOff}, s2, 16"); a(f"s_lshl_b32 s{sT}, s3, 14"); a(f"s_add_u32 s{sOff}, s{sOff}, s{sT}")
        a(f"s_mov_b32 s{sPend}, 0xffff")
        for k in range(1, 4): a(f"s_add_u32 s{sOff+k}, s{sOff}, {4096*k}")
        def issue(first):
            for i in range(16):
                L = self.lab()
                if not first: a(f"s_bitcmp0_b32 s{sPend}, {i}"); a(f"s_cbranch_scc1 {L}")
                a(f"buffer_load_dwordx4 {vr(LD+4*i,4)}, v{vDma}, {sr(sP,4)}, s{sOff+i//4} offen offset:{1024*(i%4)} sc0 sc1")
                if not first: a(f"{L}:")
        issue(True)
        self.stamp(9)
        self.flag_add(vFlag, F_WO, vOne)
        for i in range(12): a(f"v_mov_b32 v{ACC+i}, 0")
        a(f"v_bfe_u32 v{vT}, v1, 3, 1"); a(f"v_mul_u32_u24 v{vT}, 48, v{vT}"); a(f"v_bfe_u32 v{vT2}, v1, 1, 2"); a(f"v_lshl_add_u32 v{vT}, v{vT2}, 2, v{vT}")
        a(f"v_bfe_u32 v{vT3}, v1, 4, 1"); a(f"v_lshlrev_b32 v{vT3}, 1, v{vT3}"); a(f"v_bfe_u32 v{vA2}, v1, 5, 1"); a(f"v_or_b32 v{vT3}, v{vT3}, v{vA2}")
        a(f"v_add_u32 v{vT}, v{vT}, v{vT3}")
        a(f"v_and_b32 v{vA2}, 1, v1"); a(f"v_lshl_add_u32 v{vA0}, v{vA2}, 5, v{vT}"); a(f"v_lshlrev_b32 v{vA0}, 2, v{vA0}"); a(f"v_add_u32 v{vA0}, {SUM}, v{vA0}")
        a(f"v_lshlrev_b32 v{vA1}, 2, v{vT}"); a(f"v_add_u32 v{vA1}, {SUM+64}, v{vA1}")
        a(f"v_lshlrev_b32 v{vT}, 2, v1"); a(f"v_add_u32 v{vT}, {DUMP}, v{vT}")
        a(f"v_cmp_eq_u32 vcc, 1, v{vA2}"); a(f"v_cndmask_b32 v{vA1}, v{vA1}, v{vT}, vcc")
        a(f"v_bfe_u32 v{vA2}, v1, 3, 1"); a(f"v_lshl_add_u32 v{vA2}, v{vA2}, 1, v{vT3}"); a(f"v_lshlrev_b32 v{vA2}, 2, v{vA2}"); a(f"v_add_u32 v{vA2}, {SUM+384}, v{vA2}")
        a(f"v_and_b32 v{vT2}, 7, v1"); a(f"v_cmp_eq_u32 vcc, 1, v{vT2}"); a(f"v_cmp_gt_u32 s[8:9], 2, v{vT3}"); a("s_and_b64 vcc, vcc, s[8:9]")
        a(f"v_cndmask_b32 v{vA2}, v{vT}, v{vA2}, vcc")
        a(f"v_cmp_eq_u32 s[12:13], 5, v{vT2}")
        self.poll(vFlag, F_WO, 4, vT, sT)
        a(f"v_and_b32 v{vT}, 15, v1"); a(f"v_lshrrev_b32 v{vT3}, 2, v{vT}"); a(f"v_lshl_add_u32 v{vT3}, v{vT4}, 3, v{vT3}"); a(f"v_mul_u32_u24 v{vT3}, 192, v{vT3}")
        a(f"v_and_b32 v{vT}, 3, v1"); a(f"v_lshl_add_u32 v{vT3}, v{vT}, 3, v{vT3}"); a(f"s_lshl_b32 s{sT}, s3, 5"); a(f"s_add_u32 s{sT}, s{sT}, {WM}"); a(f"v_add_u32 v{vT3}, s{sT}, v{vT3}")
        for t in range(2):
            for ks in range(3):
                for e in range(2): a(f"ds_read_b64_tr_b16 {vr(WOP+12*t+4*ks+2*e,2)}, v{vT3} offset:{(32*ks+4*e)*192 + 128*t}")
        SW = self.lab("Fsweep"); DN = self.lab("Fdone")
        a(f"{SW}:")
        for i in range(16):
            L = self.lab()
            a(f"s_bitcmp0_b32 s{sPend}, {i}"); a(f"s_cbranch_scc1 {L}")
            a(f"s_lshr_b32 s{sT}, s{sPend}, {i+1}"); a(f"s_bcnt1_i32_b32 s{sT}, s{sT}")
            LQ = self.lab()
            a(f"s_waitcnt vmcnt({15-i})")
            if i < 15:
                a(f"s_cmp_eq_u32 s{sT}, {15-i}"); a(f"s_cbranch_scc1 {LQ}"); a("s_waitcnt vmcnt(0)"); a(f"{LQ}:")
            x = LD + 4 * i
            a(f"v_max3_u32 v{vT}, v{x}, v{x+1}, v{x+2}"); a(f"v_max_u32 v{vT}, v{vT}, v{x+3}")
            a(f"v_cmp_eq_u32 vcc, -1, v{vT}"); a("s_cmp_lg_u64 vcc, 0"); a(f"s_cbranch_scc1 {L}")
            a(f"s_and_b32 s14, s14, {hx(~(1<<i))}")
            for d in range(4):
                a(f"v_dot2_f32_bf16 v{ACC+2*d}, v{x+d}, s4, v{ACC+2*d}"); a(f"v_dot2_f32_bf16 v{ACC+2*d+1}, v{x+d}, s5, v{ACC+2*d+1}")
            a(f"v_add_f32 v{ACC+8}, v{x+2}, v{ACC+8}"); a(f"v_add_f32 v{ACC+9}, v{x+3}, v{ACC+9}")
            a(f"{L}:")
        a(f"s_mov_b32 s{sPend}, s14")
        a(f"s_cmp_eq_u32 s{sPend}, 0"); a(f"s_cbranch_scc1 {DN}")
        if self.safe: a("s_sub_u32 s15, s15, 16"); a(f"s_cbranch_scc1 {DN}")
        issue(False)
        a(f"s_branch {SW}")
        a(f"{DN}:")
        self.stamp(10)
        a(f"v_cmp_ne_u32 vcc, 0, v{LD+2}"); a("s_and_b64 vcc, vcc, s[12:13]"); a("s_cmp_lg_u64 vcc, 0"); a("s_cbranch_scc1 F_slow")
        a("F_red:")
        for k in range(3):
            x = ACC + 4 * k
            a(f"v_permlane32_swap_b32 v{x}, v{x+1}"); a(f"v_permlane32_swap_b32 v{x+2}, v{x+3}")
        for k in range(3):
            x = ACC + 4 * k
            a(f"v_add_f32 v{x}, v{x}, v{x+1}"); a(f"v_add_f32 v{x+2}, v{x+2}, v{x+3}")
        for k in range(3): a(f"v_permlane16_swap_b32 v{ACC+4*k}, v{ACC+4*k+2}")
        for k in range(3):
            x = ACC + 4 * k
            a(f"v_add_f32 v{x}, v{x}, v{x+2}"); a(f"ds_add_f32 v{(vA0,vA1,vA2)[k]}, v{x}")
        self.flag_add(vFlag, F_FIN, vOne)
        a(f"v_lshlrev_b32 v{vT2}, 5, v{vT4}"); a(f"v_add_u32 v{vT2}, {SUM}, v{vT2}"); a(f"v_mov_b32 v{vT3}, {SUM}")
        a(f"v_cmp_le_u32 s[12:13], 3, v{vT4}"); a(f"v_cmp_le_u32 s[10:11], 2, v{vT4}"); a(f"v_cmp_le_u32 s[8:9], 1, v{vT4}")
        self.srd(sW, 34, 3072)
        self.poll(vFlag, F_FIN, 4, vT, sT, sleep=0)
        for ks in range(3):
            a(f"ds_read_b128 {vr(LD+8*ks,4)}, v{vT2} offset:{128*ks}"); a(f"ds_read_b128 {vr(LD+8*ks+4,4)}, v{vT2} offset:{128*ks+16}")
        a(f"ds_read_b128 {vr(ACC,4)}, v{vT3} offset:384")
        for t in range(2):
            a(f"v_lshlrev_b32 v{MB+4*t}, 16, v{vQ+2*t}"); a(f"v_and_b32 v{MB+4*t+1}, 0xffff0000, v{vQ+2*t}"); a(f"v_lshlrev_b32 v{MB+4*t+2}, 16, v{vQ+2*t+1}"); a(f"v_and_b32 v{MB+4*t+3}, 0xffff0000, v{vQ+2*t+1}")
        a(f"v_lshlrev_b32 v{vT}, 3, v{vT4}"); a(f"v_and_b32 v{vT2}, 15, v1"); a(f"v_cmp_eq_u32 vcc, 0, v{vT2}")
        a("s_waitcnt lgkmcnt(0)")
        for h in range(4): a(f"v_rcp_f32 v{ACC+h}, v{ACC+h}")
        a(f"v_cndmask_b32 v{ACC+4}, v{ACC}, v{ACC+1}, s[12:13]"); a(f"v_cndmask_b32 v{ACC+5}, v{ACC+1}, v{ACC+2}, s[10:11]"); a(f"v_cndmask_b32 v{ACC+6}, v{ACC+2}, v{ACC+3}, s[8:9]")
        for ks in range(3):
            for i in range(4): a(f"v_pk_mul_f32 {vr(LD+8*ks+2*i,2)}, {vr(LD+8*ks+2*i,2)}, {vr(ACC+4+(ks&~1),2)} op_sel:[0,{ks&1}] op_sel_hi:[1,{ks&1}]")
            for i in range(4): a(f"v_cvt_pk_bf16_f32 v{BO+4*ks+i}, v{LD+8*ks+2*i}, v{LD+8*ks+2*i+1}")
        for ks in range(3):
            for t in range(2): a(f"v_mfma_f32_16x16x32_bf16 {vr(LD+4*t,4)}, {vr(WOP+12*t+4*ks,4)}, {vr(BO+4*ks,4)}, {vr(LD+4*t,4) if ks else 0}")
        a("s_and_saveexec_b64 s[8:9], vcc")
        for t in range(2):
            y = LD + 4 * t
            a(f"v_cvt_pk_bf16_f32 v{y}, v{y}, v{y+1}"); a(f"v_cvt_pk_bf16_f32 v{y+2}, v{y+2}, v{y+3}")
            a(f"v_and_b32 v{y+1}, 0xffff0000, v{y}"); a(f"v_lshlrev_b32 v{y}, 16, v{y}"); a(f"v_and_b32 v{y+3}, 0xffff0000, v{y+2}"); a(f"v_lshlrev_b32 v{y+2}, 16, v{y+2}")
            for i in range(4): a(f"v_add_f32 v{y+i}, v{y+i}, v{MB+4*t+i}")
            a(f"v_cvt_pk_bf16_f32 v{ACC+2*t}, v{y}, v{y+1}"); a(f"v_cvt_pk_bf16_f32 v{ACC+2*t+1}, v{y+2}, v{y+3}")
            if t == 0: a(f"buffer_store_dwordx2 {vr(ACC,2)}, v{vT}, {sr(sW,4)}, s7 offen")
            else:
                a("s_cmp_ge_u32 s3, 2"); a("s_cbranch_scc1 F_end")
                a(f"buffer_store_dwordx2 {vr(ACC+2,2)}, v{vT}, {sr(sW,4)}, s7 offen offset:128")
        a("F_end:")
        a("s_mov_b64 exec, -1")
        self.stamp(11); self.stamp_store(24)
        a("s_endpgm")
        a("F_slow:")
        a(f"v_and_b32 v{vT}, 56, v1"); a(f"v_or_b32 v{vT}, 3, v{vT}"); a(f"v_lshlrev_b32 v{vT}, 2, v{vT}")
        for i in range(16):
            a(f"ds_bpermute_b32 v{MB+2*i}, v{vT}, v{LD+4*i+2}"); a(f"ds_bpermute_b32 v{MB+2*i+1}, v{vT}, v{LD+4*i+3}")
        a(f"v_bfe_u32 v{vT3}, v1, 3, 1"); a(f"v_lshlrev_b32 v{vT3}, 3, v{vT3}"); a(f"v_add_u32 v{vT3}, {MX}, v{vT3}")
        for i in range(12): a(f"v_mov_b32 v{ACC+i}, 0")
        a("s_waitcnt lgkmcnt(0)")
        a(f"v_mov_b32 v{vM0}, v{MB}"); a(f"v_mov_b32 v{vM1}, v{MB+1}")
        for i in range(1, 16): a(f"v_max_f32 v{vM0}, v{vM0}, v{MB+2*i}"); a(f"v_max_f32 v{vM1}, v{vM1}, v{MB+2*i+1}")
        a(f"ds_max_f32 v{vT3}, v{vM0}"); a(f"ds_max_f32 v{vT3}, v{vM1} offset:4")
        self.flag_add(vFlag, F_FMX, vOne)
        self.poll(vFlag, F_FMX, 4, vT, sT)
        a(f"ds_read_b64 {vr(vM0,2)}, v{vT3}"); a("s_waitcnt lgkmcnt(0)")
        a(f"v_and_b32 v{vT}, 1, v1"); a(f"v_cmp_eq_u32 s[12:13], 1, v{vT}"); a(f"v_bfe_u32 v{vT}, v1, 2, 1"); a(f"v_cmp_eq_u32 s[10:11], 1, v{vT}")
        for i in range(16):
            m0, m1 = MB + 2 * i, MB + 2 * i + 1
            a(f"v_sub_f32 v{m0}, v{m0}, v{vM0}"); a(f"v_sub_f32 v{m1}, v{m1}, v{vM1}"); a(f"v_exp_f32 v{m0}, v{m0}"); a(f"v_exp_f32 v{m1}, v{m1}")
            a(f"v_cndmask_b32 v{vT}, v{m0}, v{m1}, s[12:13]"); a(f"v_cndmask_b32 v{vT3}, v{m0}, v{m1}, s[10:11]")
            for d in range(4):
                sc = vT if d < 2 else vT3
                a(f"v_lshlrev_b32 v{BO}, 16, v{LD+4*i+d}"); a(f"v_and_b32 v{BO+1}, 0xffff0000, v{LD+4*i+d}")
                a(f"v_fmac_f32 v{ACC+2*d}, v{BO}, v{sc}"); a(f"v_fmac_f32 v{ACC+2*d+1}, v{BO+1}, v{sc}")
            a(f"v_fmac_f32 v{ACC+8}, v{LD+4*i+2}, v{m0}"); a(f"v_fmac_f32 v{ACC+9}, v{LD+4*i+3}, v{m1}")
        a("s_branch F_red")

    def attention(self):
        a = self.a; lg = Ctr(a, "lgkmcnt", 15)
        vDma, vFlag, vOne, vT, vT2, vT3, vT4, vT5, vSA0, vSA1, vUA0, vUA1, vM, vPF = range(2, 16)
        LA = 16; AB = 20; U = 44; S = 92; P = 108; SA = 116; UA = 140; WV = 164; LD_ = 236
        vA0, vA1, vA2, vA3 = 240, 241, 242, 243
        sW = 40; sA, sHP, sKH, sT, sM, sKn, sSlow, sR = 44, 45, 46, 47, 48, 49, 50, 54
        kw = self.kw
        a(f"s_sub_u32 s{sA}, s3, 4"); a(f"s_lshr_b32 s{sHP}, s{sA}, 1"); a(f"s_and_b32 s{sKH}, s{sA}, 1")
        a(f"v_lshlrev_b32 v{vDma}, 4, v1")
        a(f"v_mov_b32 v{vFlag}, {FLAGS}"); a(f"v_mov_b32 v{vOne}, 1")
        Ls = self.lab()
        a(f"s_cmp_lg_u32 s{sA}, 0"); a(f"s_cbranch_scc1 {Ls}")
        a(f"v_lshl_add_u32 v{vT3}, v1, 2, v{vFlag}"); a(f"v_mov_b32 v{vT4}, 0"); a(f"ds_write_b32 v{vT3}, v{vT4}"); a("s_waitcnt lgkmcnt(0)")
        a(f"{Ls}:")
        self.srd(sW, 22, 18432)
        a("s_barrier")
        cnt = [0]
        pend_flags = []
        def cb():
            n = cnt[0]
            if n >= kw:
                a(f"s_waitcnt vmcnt({kw-1})")
                while pend_flags and sum(1 for p in range(pend_flags[0][0], n) if p % 5 != 4) >= kw - 1:
                    self.flag_add(vFlag, pend_flags.pop(0)[1], vOne)
            cnt[0] += 1
        self.dma_quarter(vDma, sW, sA, WLAT, sT, sM, cb); pend_flags.append((cnt[0], F_WL))
        self.srd(sW, 16, 3072)
        Ls = self.lab()
        a(f"s_cmp_lt_u32 s{sA}, 2"); a(f"s_cbranch_scc1 {Ls}")
        a(f"s_and_b32 s{sT}, s{sA}, 1"); a(f"s_lshl_b32 s{sT}, s{sT}, 11"); a(f"s_add_u32 s{sM}, s{sT}, {QS}"); a(f"s_mov_b32 m0, s{sM}"); a("s_nop 0")
        a(f"buffer_load_dwordx4 v{vDma}, {sr(sW,4)}, s{sT} offen lds")
        a(f"s_cmp_eq_u32 s{sA}, 3"); a(f"s_cbranch_scc1 {Ls}")
        a(f"buffer_load_dwordx4 v{vDma}, {sr(sW,4)}, s{sT} offen offset:1024 lds")
        a(f"{Ls}:")
        setup = self.att_setup(vT, vT2, vT3, vT4, vT5, vSA0, vSA1, vUA0, vUA1, vA0, vA1, vA2, vA3, vPF, vFlag, vM, LA, P, sHP, sKH, sT)
        self.srd(sW, 24, 18432); self.dma_quarter(vDma, sW, sA, WQ, sT, sM, cb); pend_flags.append((cnt[0], F_W1))
        self.srd(sW, 32, 18432); self.dma_quarter(vDma, sW, sA, WM, sT, sM, cb); pend_flags.append((cnt[0], F_W2))
        self.srd(sW, 26, 18432)
        a(f"s_mul_i32 s{sT}, s{sKH}, 5120"); a(f"s_add_u32 s{sM}, s51, s{sT}"); a(f"s_mov_b32 m0, s{sM}"); a(f"s_mul_i32 s52, s{sHP}, 9216"); a(f"s_add_u32 s{sT}, s{sT}, s52")
        for m in range(4): cb(); a(f"buffer_load_dwordx4 v{vDma}, {sr(sW,4)}, s{sT} offen offset:{1024*m} lds")
        Ls = self.lab()
        a(f"s_add_u32 s{sM}, s{sM}, 4096"); a(f"s_mov_b32 m0, s{sM}"); a(f"s_add_u32 s{sT}, s{sT}, 4096"); cb()
        a(f"s_cmp_lg_u32 s{sKH}, 0"); a(f"s_cbranch_scc1 {Ls}")
        a(f"buffer_load_dwordx4 v{vDma}, {sr(sW,4)}, s{sT} offen lds")
        a(f"{Ls}:")
        self.stamp(2)
        for (pos, fl) in pend_flags:
            if fl == F_W2: continue
            a(f"s_waitcnt vmcnt({4 + (4 if fl == F_W1 else 8)})"); self.flag_add(vFlag, fl, vOne)
        w2_pending = any(fl == F_W2 for _, fl in pend_flags)
        if self.aprio: a(f"s_setprio {self.aprio}")
        qB = SA; DQ = WV; DA = U; OP = WV + 32; QB = UA
        self.poll(vFlag, F_W1, 4, vT, sT)
        self.stamp(3)
        for ks in range(6): a(f"ds_read_b128 {vr(qB+4*ks,4)}, v{vA0} offset:{ks*32}"); lg.issue("q")
        NR = 8
        def stage(jobs, extra=None):
            def rd(n):
                k, T, ks = jobs[n]; r = OP + (n % NR) * 4
                if k == "q":
                    for e in range(2): a(f"ds_read_b64_tr_b16 {vr(r+2*e,2)}, v{vA2 if T else vA1} offset:{ks*768 + e*192}"); lg.issue(n)
                elif k == "m":
                    for e in range(2): a(f"ds_read_b64_tr_b16 {vr(r+2*e,2)}, v{vA3} offset:{ks*3072 + e*768 + T*64}"); lg.issue(n)
                else:
                    if ks == 1: a(f"ds_read_b128 {vr(r,4)}, v{vT5} offset:{T*1536}")
                    else: a(f"ds_read_b128 {vr(r,4)}, v{vT4} offset:{T*1536 + (4624 if ks == 2 else 0)}")
                    lg.issue(n)
            AH = 5
            for n in range(min(AH, len(jobs))): rd(n)
            for n, (k, T, ks) in enumerate(jobs):
                if n + AH < len(jobs): rd(n + AH)
                lg.wait(n)
                r = vr(OP + (n % NR) * 4, 4)
                if k == "q": d = vr(DQ + 16 * T, 16); a(f"v_mfma_f32_32x32x16_bf16 {d}, {r}, {vr(qB+4*ks,4)}, {d if ks else 0}")
                elif k == "m": d = vr(DA + 16 * T, 16); a(f"v_mfma_f32_32x32x16_bf16 {d}, {r}, {vr(qB+4*ks,4)}, {d if ks else 0}")
                else: d = vr(DA + 16 * T, 16); a(f"v_mfma_f32_32x32x16_bf16 {d}, {r}, {vr(QB+4*ks,4)}, {d}")
                if extra: extra(n)
            lg.q = []
        stage([("q", T, ks) for T in range(2) for ks in range(6)])
        if w2_pending: a("s_waitcnt vmcnt(4)"); self.flag_add(vFlag, F_W2, vOne)
        self.poll(vFlag, F_W2, 4, vT, sT)
        def qscale(n):
            if 2 <= n < 14:
                jn = n - 2; s = jn // 4; p = jn % 4; x = DQ + 8 * s + 2 * p
                a(f"v_mul_f32 v{x}, v{P+s}, v{x}"); a(f"v_mul_f32 v{x+1}, v{P+s}, v{x+1}"); a(f"v_cvt_pk_bf16_f32 v{QB+4*s+p}, v{x}, v{x+1}")
        stage([("m", T, ks) for T in range(3) for ks in range(6)], qscale)
        a("s_waitcnt vmcnt(0)"); self.flag_add(vFlag, F_W3, vOne)
        self.poll(vFlag, F_W3, 4, vT, sT)
        self.stamp(4)
        a(f"s_mov_b32 s55, {hx(f2u(96**-0.5 * LOG2E))}")
        def afin(T):
            for i in range(8):
                x = DA + 16 * T + 2 * i
                a(f"v_mul_f32 v{x}, s55, v{x}"); a(f"v_mul_f32 v{x+1}, s55, v{x+1}"); a(f"v_cvt_pk_bf16_f32 v{AB+8*T+i}, v{x}, v{x+1}")
        stage([("k", T, s) for T in range(3) for s in range(3)])
        self.flag_add(vFlag, F_DONE, vOne)
        a(f"v_mov_b32 v{vT}, 0")
        for T in range(3): afin(T)
        for i in range(24): a(f"v_dot2_f32_bf16 v{vT}, v{AB+i}, v{AB+i}, v{vT}")
        for i in range(48): a(f"v_mov_b32 v{U+i}, 0")
        for i in range(4): a(f"v_mov_b32 v{LD_+i}, 0")
        a(f"v_mov_b32 v{vT2}, v{vT}"); a(f"v_permlane32_swap_b32 v{vT}, v{vT2}"); a(f"v_add_f32 v{vT}, v{vT}, v{vT2}")
        thr = (BOUND / 1.01) ** 2 / 96.0
        if self.force_slow: thr = -1.0
        a(f"v_cmp_nge_f32 vcc, {hx(f2u(thr))}, v{vT}")
        a(f"s_mov_b32 s{sKn}, 0"); a(f"s_mov_b32 s{sR}, 0")
        a("s_cmp_lg_u64 vcc, 0"); a(f"s_cselect_b32 s{sSlow}, 1, 0")
        self.stamp(5)
        LSLOW = self.lab("Lslow"); LEPI = self.lab("Lepi")
        a(f"s_cbranch_scc1 {LSLOW}")
        def wait_tile():
            L = self.lab("Lw"); Dn = self.lab("Lwd")
            a(f"{L}:"); a(f"s_cmp_gt_u32 s{sKn}, s{sR}"); a(f"s_cbranch_scc1 {Dn}")
            a(f"ds_read_b64 {vr(vT4,2)}, v{vPF} offset:{F_P}"); a("s_waitcnt lgkmcnt(0)")
            a(f"v_min_u32 v{vT4}, v{vT4}, v{vT5}"); a(f"v_readfirstlane_b32 s{sKn}, v{vT4}")
            if self.safe: a("s_sub_u32 s15, s15, 1"); a(f"s_cbranch_scc1 {Dn}")
            a(f"s_branch {L}"); a(f"{Dn}:")
        def s_part(lg, with_tr):
            for ks in range(6): a(f"ds_read_b128 {vr(SA+4*ks,4)}, v{vSA1 if ks&1 else vSA0} offset:{(ks>>1)*1024}"); lg.issue(f"s{ks}")
            for ks in range(6):
                lg.wait(f"s{ks}")
                a(f"v_mfma_f32_32x32x16_bf16 {vr(S,16)}, {vr(SA+4*ks,4)}, {vr(AB+4*ks,4)}, {vr(S,16) if ks else 0}")
                if with_tr:
                    s, T = ks // 3, ks % 3
                    for e in range(2): a(f"ds_read_b64_tr_b16 {vr(UA+(s*3+T)*4+2*e,2)}, v{vUA1 if e else vUA0} offset:{s*3072 + T*1024}"); lg.issue(f"t{s}{T}")
            for v in (vSA0, vSA1, vUA0, vUA1): a(f"v_add_u32 v{v}, {RS}, v{v}")
            a(f"s_add_u32 s{sR}, s{sR}, 1")
        def wv_dma():
            self.poll(vFlag, F_DONE, 8, vT, sT)
            self.srd(sW, 28, 18432); self.dma_quarter(vDma, sW, sA, WQ, sT, sM)
        def wv_flag():
            a("s_waitcnt vmcnt(0)"); self.flag_add(vFlag, F_WV, vOne)
        def wv_regs():
            self.poll(vFlag, F_WV, 4, vT, sT)
            a(f"s_mul_i32 s{sT}, s{sHP}, 9216"); a(f"s_add_u32 s{sT}, s{sT}, {WQ}")
            a(f"v_bfe_u32 v{vT}, v1, 2, 2"); a(f"v_lshrrev_b32 v{vT2}, 5, v1"); a(f"v_lshl_add_u32 v{vT}, v{vT2}, 2, v{vT}")
            a(f"v_mul_u32_u24 v{vT}, 48, v{vT}"); a(f"v_add_u32 v{vT}, s{sT}, v{vT}")
            a(f"v_and_b32 v{vT2}, 3, v1"); a(f"v_lshl_add_u32 v{vA0}, v{vT2}, 3, v{vT}")
            a(f"v_add_u32 v{vA2}, {4608+16}, v{vA0}"); a(f"v_add_u32 v{vA1}, 32, v{vA0}"); a(f"v_add_u32 v{vA3}, {4608-16}, v{vA0}")
            a(f"v_cmp_le_u32 vcc, 2, v{vT2}"); a(f"v_cndmask_b32 v{vA1}, v{vA1}, v{vA3}, vcc")
            for tau in range(3):
                for sp in range(6):
                    for e in range(2): a(f"ds_read_b64_tr_b16 {vr(WV+(tau*6+sp)*4+2*e,2)}, v{(vA0,vA1,vA2)[tau]} offset:{(16*sp + 8*e)*48}")
            a(f"v_bfe_u32 v{vT}, v1, 4, 1"); a(f"v_bfe_u32 v{vT2}, v1, 3, 1")
            a(f"v_add_u32 v{vA0}, -1, v{vT}"); a(f"v_sub_u32 v{vA2}, 0, v{vT}"); a(f"v_xor_b32 v{vA1}, v{vT}, v{vT2}"); a(f"v_add_u32 v{vA1}, -1, v{vA1}")
            a("s_waitcnt lgkmcnt(0)")
            for tau in range(3):
                for i in range(24): a(f"v_and_b32 v{WV+tau*24+i}, v{(vA0,vA1,vA2)[tau]}, v{WV+tau*24+i}")
        def tile(slow):
            lg = Ctr(a, "lgkmcnt", 15)
            s_part(lg, True)
            def ex(i):
                if slow: a(f"v_sub_f32 v{S+i}, v{S+i}, v{vM}")
                a(f"v_exp_f32 v{S+i}, v{S+i}")
            def cv(i): a(f"v_cvt_pk_bf16_f32 v{P+i}, v{S+2*i}, v{S+2*i+1}")
            def um(s, T):
                lg.wait(f"t{s}{T}")
                a(f"v_mfma_f32_32x32x16_bf16 {vr(U+16*T,16)}, {vr(UA+(s*3+T)*4,4)}, {vr(P+4*s,4)}, {vr(U+16*T,16)}")
            def lm(s): a(f"v_mfma_f32_16x16x32_bf16 {vr(LD_,4)}, {vr(LA,4)}, {vr(P+4*s,4)}, {vr(LD_,4)}")
            for i in range(8): ex(i)
            for i in range(4): cv(i)
            ex(8); ex(9)
            um(0, 0); ex(10); ex(11); ex(12)
            um(0, 1); ex(13); ex(14); ex(15)
            um(0, 2)
            for i in range(4, 8): cv(i)
            lm(0)
            um(1, 0); um(1, 1); um(1, 2); lm(1)
        LT = self.lab("Ltile"); LX1 = self.lab(); LX2 = self.lab(); LX3 = self.lab(); LB = self.lab()
        a(f"{LT}:")
        wait_tile()
        self.stamp_if(sR, 0, 6); self.stamp_if(sR, 4, 7); self.stamp_if(sR, 8, 8)
        tile(False)
        a(f"s_cmp_eq_u32 s{sR}, 2"); a(f"s_cbranch_scc1 {LX1}")
        a(f"s_cmp_eq_u32 s{sR}, 4"); a(f"s_cbranch_scc1 {LX2}")
        a(f"s_cmp_eq_u32 s{sR}, 6"); a(f"s_cbranch_scc1 {LX3}")
        a(f"s_cmp_lt_u32 s{sR}, 9"); a(f"s_cbranch_scc1 {LT}")
        a(f"{LEPI}:")
        self.stamp(9)
        PB = SA; DP = S
        a(f"s_lshl_b32 s{sT}, s{sHP}, 12"); a(f"s_add_u32 s{sT}, s{sT}, {CMB}"); a(f"v_add_u32 v{vT2}, s{sT}, v{vDma}")
        a(f"s_lshl_b32 s{sT}, s{sHP}, 2"); a(f"v_add_u32 v{vT3}, s{sT}, v{vFlag}")
        a(f"v_mov_b32 v{DP+14}, v{vM}"); a(f"v_mov_b32 v{DP+15}, v{vM}")
        for i in range(4): a(f"v_cvt_pk_bf16_f32 v{PB+i}, v{U+2*i}, v{U+2*i+1}")
        a(f"v_permlane16_swap_b32 v{DP+14}, v{DP+15}")
        for sp in range(6):
            for tau in range(3):
                d = vr(DP + 4 * tau, 4)
                a(f"v_mfma_f32_16x16x32_bf16 {d}, {vr(WV+(tau*6+sp)*4,4)}, {vr(PB+4*sp,4)}, {d if sp else 0}")
                if sp < 5:
                    for i in ((0, 1), (2,), (3,))[tau]:
                        j = 4 * (sp + 1) + i
                        a(f"v_cvt_pk_bf16_f32 v{PB+j}, v{U+2*j}, v{U+2*j+1}")
        a(f"v_mov_b32 v{DP+12}, v{LD_}"); a(f"v_mov_b32 v{DP+13}, v{LD_+1}")
        LK0 = self.lab("Lk0")
        a(f"s_cmp_eq_u32 s{sKH}, 0"); a(f"s_cbranch_scc1 {LK0}")
        for i in (3, 0, 1, 2): a(f"ds_write_b128 v{vT2}, {vr(DP+4*i,4)} offset:{1024*i}")
        self.flag_add(vT3, F_CMB, vOne)
        self.stamp(10); self.stamp_store(44)
        a("s_endpgm")
        a(f"{LK0}:")
        a(f"v_and_b32 v{vT4}, 15, v1"); a(f"v_lshlrev_b32 v{vT4}, 16, v{vT4}"); a(f"v_lshrrev_b32 v{vT5}, 4, v1"); a(f"v_lshl_add_u32 v{vT4}, v{vT5}, 5, v{vT4}")
        a(f"s_lshl_b32 s57, s2, 8"); a(f"s_lshl_b32 s58, s{sHP}, 7"); a("s_add_u32 s57, s57, s58")
        self.srd(sW, 38, 1 << 20)
        a(f"v_mov_b32 v{vA0}, s{sSlow}")
        a(f"v_cmp_eq_u32 vcc, 1, v{vT5}"); a(f"v_cndmask_b32 v{DP+14}, v{vA0}, v{DP+14}, vcc"); a(f"v_cndmask_b32 v{DP+15}, v{vA0}, v{DP+15}, vcc")
        a(f"v_cmp_eq_u32 vcc, 0, v{vT5}")
        self.poll(vT3, F_CMB, 1, vT, sT, sleep=0)
        for i in range(4): a(f"ds_read_b128 {vr(UA+4*i,4)}, v{vT2} offset:{1024*i}")
        for i in range(7):
            if i in (0, 2, 4, 6): a(f"s_waitcnt lgkmcnt({3 - i//2})")
            a(f"v_pk_add_f32 {vr(DP+2*i,2)}, {vr(DP+2*i,2)}, {vr(UA+2*i,2)}")
            if i < 6: a(f"v_cvt_pk_bf16_f32 v{P+i}, v{DP+2*i}, v{DP+2*i+1}")
        a(f"v_cndmask_b32 v{P+6}, v{DP+14}, v{DP+12}, vcc"); a(f"v_cndmask_b32 v{P+7}, v{DP+15}, v{DP+13}, vcc")
        for i in range(8): a(f"v_min_u32 v{P+i}, -2, v{P+i}")
        a(f"buffer_store_dwordx4 {vr(P,4)}, v{vT4}, {sr(sW,4)}, s57 offen sc0 sc1")
        a(f"buffer_store_dwordx4 {vr(P+4,4)}, v{vT4}, {sr(sW,4)}, s57 offen offset:16 sc0 sc1")
        self.stamp(10)
        if self.stamps: a("s_waitcnt vmcnt(0)"); self.stamp(11)
        self.stamp_store(44)
        a("s_endpgm")
        a(f"{LX1}:"); wv_dma(); a(f"s_branch {LT}")
        a(f"{LX2}:"); wv_flag(); a(f"s_branch {LT}")
        a(f"{LX3}:"); wv_regs(); a(f"s_branch {LT}")
        a(f"{LSLOW}:")
        a(f"v_mov_b32 v{vM}, 0xff800000")
        L1 = self.lab("Ls1"); L2 = self.lab("Ls2")
        a(f"{L1}:")
        wait_tile()
        s_part(Ctr(a, "lgkmcnt", 15), False)
        for i in range(8): a(f"v_max3_f32 v{vM}, v{S+2*i}, v{S+2*i+1}, v{vM}")
        a(f"s_cmp_lt_u32 s{sR}, 9"); a(f"s_cbranch_scc1 {L1}")
        for v in (vSA0, vSA1, vUA0, vUA1): a(f"v_add_u32 v{v}, {hx(-9*RS)}, v{v}")
        a(f"v_mov_b32 v{vT2}, v{vM}"); a(f"v_permlane32_swap_b32 v{vM}, v{vT2}"); a(f"v_max_f32 v{vM}, v{vM}, v{vT2}")
        wv_dma(); wv_flag(); wv_regs()
        a(f"v_lshlrev_b32 v{vT}, 2, v1"); a(f"s_lshl_b32 s{sT}, s{sA}, 8"); a(f"s_add_u32 s{sT}, s{sT}, {MXS}"); a(f"v_add_u32 v{vT2}, s{sT}, v{vT}"); a(f"ds_write_b32 v{vT2}, v{vM}")
        a(f"s_lshl_b32 s{sT}, s{sHP}, 2"); a(f"v_add_u32 v{vT3}, s{sT}, v{vFlag}")
        self.flag_add(vT3, F_MX, vOne)
        self.poll(vT3, F_MX, 2, vT4, sT)
        a(f"v_xor_b32 v{vT2}, 256, v{vT2}"); a(f"ds_read_b32 v{vT2}, v{vT2}"); a("s_waitcnt lgkmcnt(0)")
        a(f"v_max_f32 v{vM}, v{vM}, v{vT2}"); a(f"s_mov_b32 s{sR}, 0")
        a(f"{L2}:")
        tile(True)
        a(f"s_cmp_lt_u32 s{sR}, 9"); a(f"s_cbranch_scc1 {L2}")
        a(f"s_branch {LEPI}")

    def att_setup(self, vT, vT2, vT3, vT4, vT5, vSA0, vSA1, vUA0, vUA1, vA0, vA1, vA2, vA3, vPF, vFlag, vM, LA, P, sHP, sKH, sT):
        a = self.a
        a(f"s_mul_i32 s51, s{sHP}, {WK23-WK01}"); a(f"s_add_u32 s51, s51, {WK01}")
        a(f"v_mov_b32 v{vM}, 0")
        a(f"s_lshl_b32 s{sT}, s{sKH}, 3"); a(f"v_add_u32 v{vPF}, s{sT}, v{vFlag}")
        a(f"s_mul_i32 s53, s{sKH}, 6144")
        a(f"v_and_b32 v{vT}, 15, v1"); a(f"v_lshrrev_b32 v{vT2}, 5, v1"); a(f"v_bfe_u32 v{vT3}, v1, 4, 1")
        a(f"v_cmp_eq_u32 vcc, v{vT}, v{vT3}"); a(f"v_mov_b32 v{vT4}, 0x3f803f80")
        for i in range(4): a(f"v_cndmask_b32 v{LA+i}, 0, v{vT4}, vcc")
        a(f"v_mul_u32_u24 v{vT4}, {SL}, v{vT3}"); a(f"v_add_u32 v{vT4}, s53, v{vT4}")
        a(f"v_lshlrev_b32 v{vT5}, 2, v{vT2}"); a(f"v_xor_b32 v{vT5}, v{vT5}, v{vT}")
        a(f"v_lshl_add_u32 v{vSA0}, v{vT2}, 4, v{vT5}"); a(f"v_lshl_add_u32 v{vSA0}, v{vSA0}, 4, v{vT4}")
        a(f"v_xor_b32 v{vT5}, 10, v{vT5}")
        a(f"v_lshl_add_u32 v{vSA1}, v{vT2}, 4, v{vT5}"); a(f"v_add_u32 v{vSA1}, 32, v{vSA1}"); a(f"v_lshl_add_u32 v{vSA1}, v{vSA1}, 4, v{vT4}")
        a(f"v_bfe_u32 v{vT4}, v1, 1, 1"); a(f"v_lshl_add_u32 v{vT4}, v{vT3}, 1, v{vT4}")
        a(f"v_bfe_u32 v{vT5}, v1, 2, 2"); a(f"v_lshl_add_u32 v{vT5}, v{vT2}, 2, v{vT5}")
        a(f"v_lshlrev_b32 v{vA0}, 1, v{vT3}"); a(f"v_lshl_add_u32 v{vA0}, v{vT4}, 2, v{vA0}")
        a(f"v_xor_b32 v{vT5}, v{vT5}, v{vA0}"); a(f"v_lshl_add_u32 v{vT5}, v{vT4}, 4, v{vT5}"); a(f"v_lshlrev_b32 v{vT5}, 4, v{vT5}")
        a(f"v_and_b32 v{vA0}, 1, v1"); a(f"v_lshl_add_u32 v{vT5}, v{vA0}, 3, v{vT5}"); a(f"v_add_u32 v{vUA0}, s53, v{vT5}"); a(f"v_xor_b32 v{vUA1}, 128, v{vUA0}")
        a(f"v_mul_u32_u24 v{vA0}, 192, v{vT}"); a(f"v_lshl_add_u32 v{vA0}, v{vT2}, 4, v{vA0}"); a(f"v_add_u32 v{vA0}, {QS}, v{vA0}")
        a(f"v_and_b32 v{vT4}, 1, v1"); a(f"v_lshlrev_b32 v{vT4}, 3, v{vT4}"); a(f"v_bfe_u32 v{vT5}, v1, 1, 1"); a(f"v_lshl_add_u32 v{vT4}, v{vT5}, 2, v{vT4}")
        a(f"v_lshl_add_u32 v{vT4}, v{vT3}, 4, v{vT4}")
        a(f"v_bfe_u32 v{vT5}, v1, 2, 2"); a(f"v_lshl_add_u32 v{vT5}, v{vT2}, 3, v{vT5}")
        a(f"v_mul_u32_u24 v{vA3}, 192, v{vT5}"); a(f"v_lshl_add_u32 v{vA3}, v{vT4}, 1, v{vA3}"); a(f"v_add_u32 v{vA3}, {WM}, v{vA3}")
        a(f"s_mul_i32 s{sT}, s{sHP}, 9216"); a(f"s_add_u32 s{sT}, s{sT}, {WQ}")
        a(f"v_mul_u32_u24 v{vT5}, 48, v{vT5}"); a(f"v_add_u32 v{vT5}, s{sT}, v{vT5}")
        a(f"v_lshl_add_u32 v{vA1}, v{vT4}, 1, v{vT5}"); a(f"v_add_u32 v{vA2}, 4560, v{vA1}")
        a(f"v_cmp_le_u32 vcc, 24, v{vT4}"); a(f"v_cndmask_b32 v{vA1}, v{vA1}, v{vA2}, vcc")
        a(f"v_and_b32 v{vT4}, 15, v{vT4}"); a(f"v_lshl_add_u32 v{vA2}, v{vT4}, 1, v{vT5}"); a(f"v_add_u32 v{vA2}, {4608+16}, v{vA2}")
        a(f"v_and_b32 v{vT4}, 19, v1"); a(f"v_bfe_u32 v{vT5}, v1, 2, 1"); a(f"v_lshl_or_b32 v{vT4}, v{vT5}, 3, v{vT4}")
        a(f"v_bfe_u32 v{vT5}, v1, 3, 1"); a(f"v_lshl_or_b32 v{vT4}, v{vT5}, 2, v{vT4}")
        a(f"v_mul_u32_u24 v{vT4}, 48, v{vT4}"); a(f"v_add_u32 v{vT4}, s51, v{vT4}")
        a(f"v_mul_u32_u24 v{vT5}, 4576, v{vT2}"); a(f"v_add3_u32 v{vT5}, v{vT5}, v{vT4}, 32")
        a(f"v_lshl_add_u32 v{vT4}, v{vT2}, 4, v{vT4}")
        a(f"v_cmp_eq_u32 vcc, 0, v{vT3}"); a(f"v_cndmask_b32 v{P}, 0, 2.0, vcc"); a(f"v_cndmask_b32 v{P+2}, 2.0, 0, vcc")
        a(f"v_cmp_eq_u32 vcc, v{vT2}, v{vT3}"); a(f"v_cndmask_b32 v{P+1}, 0, 2.0, vcc")

    def main_kernel(self):
        a = self.a
        a(".text"); a(f".globl {NAME}_kernel"); a(".p2align 8"); a(f".type {NAME}_kernel,@function"); a(f"{NAME}_kernel:")
        a("s_load_dwordx16 s[16:31], s[0:1], 0"); a("s_load_dwordx8 s[32:39], s[0:1], 64")
        a("s_cmp_ge_u32 s2, 256"); a("s_cbranch_scc1 L_exit")
        if self.stamps:
            for i in range(15): a(f"s_mov_b64 s[{66+2*i}:{67+2*i}], 0")
        self.stamp(0)
        a("v_lshrrev_b32 v2, 6, v0"); a("v_and_b32 v1, 63, v0"); a("v_readfirstlane_b32 s3, v2")
        if self.safe: a("s_mov_b32 s15, 100000")
        a("s_mov_b32 s14, 0xffff")
        a("s_cmp_ge_u32 s3, 4")
        a("s_waitcnt lgkmcnt(0)")
        self.stamp(1)
        a("s_cbranch_scc1 L_att")
        self.helper()
        self.finalizer()
        a("L_att:")
        self.attention()
        a("L_exit:"); a("s_endpgm")

    def build(self):
        self.main_kernel()
        hdr = open("cdna_kernels/%s.s.ref" % NAME).read().split("; Override")[0]
        hdr += f"; @launch grid=(256,1,1) block=(512,1,1) lds={LDS_MAIN}\n"
        hdr += '.amdgcn_target "amdgcn-amd-amdhsa--gfx950"\n'
        body = self.a.render(verbose=False)
        tail = f""".section .rodata,"a"
.p2align 6
.amdhsa_kernel {NAME}_kernel
  .amdhsa_next_free_vgpr 256
  .amdhsa_next_free_sgpr 96
  .amdhsa_accum_offset 256
  .amdhsa_group_segment_fixed_size 0
  .amdhsa_kernarg_size 96
  .amdhsa_user_sgpr_count 2
  .amdhsa_user_sgpr_kernarg_segment_ptr 1
  .amdhsa_system_sgpr_workgroup_id_x 1
  .amdhsa_float_denorm_mode_32 3
.end_amdhsa_kernel
"""
        return hdr + body + tail

if __name__ == "__main__":
    open("k2.s", "w").write(Gen().build())
    open("k2_st.s", "w").write(Gen(stamps=True).build())
    open("k2_slow.s", "w").write(Gen(force_slow=True).build())
```
